```python
import torch

def _softmax(x, axis=-1):
    return torch.softmax(x, dim=axis)
def _gelu(x):
    return torch.nn.functional.gelu(x, approximate="tanh")
def _silu(x):
    return torch.nn.functional.silu(x)
def _sigmoid(x):
    return torch.sigmoid(x)
def _layernorm(x, axis=-1, eps=1e-5):
    m = x.mean(dim=axis, keepdim=True)
    v = x.var(dim=axis, keepdim=True, unbiased=False)
    return (x - m) / torch.sqrt(v + eps)
def _scatter_add(tgt, idx, src, axis=0):
    return tgt.clone().index_add_(axis, idx, src)
def _segment_sum(src, seg, n):
    out = torch.zeros((n,) + src.shape[1:], dtype=src.dtype)
    return out.index_add_(0, seg, src)
def _pad(x, pw):
    flat = tuple(v for pair in reversed(pw) for v in pair)
    return torch.nn.functional.pad(x, flat)

kernel_name = 'concat_heads__ssm_conv_s5__linear_attn_block__prompt'

def setup_inputs():

    _w = (lambda a: (lambda t: t.to(torch.bfloat16) if t.is_floating_point() else t)(torch.as_tensor(a)))
    def _A_setup():
        B, S, D = 1, 2048, 448
        P = D
        Lambda_re = -0.5 * (lambda _x: torch.exp(torch.as_tensor(_x)))((lambda *s: torch.randn(*s, dtype=torch.bfloat16) * 0.2)(P))
        Lambda_im = (lambda *s: torch.randn(*s, dtype=torch.bfloat16) * 0.4)(P) * 1.0
        B_re = (lambda *s: torch.randn(*s, dtype=torch.bfloat16) * 0.2)(P, D) * (D ** -0.5)
        B_im = (lambda *s: torch.randn(*s, dtype=torch.bfloat16) * 0.2)(P, D) * (D ** -0.5)
        C_re = (lambda *s: torch.randn(*s, dtype=torch.bfloat16) * 0.2)(D, P) * (P ** -0.5)
        C_im = (lambda *s: torch.randn(*s, dtype=torch.bfloat16) * 0.2)(D, P) * (P ** -0.5)
        log_dt = (lambda *s: torch.randn(*s, dtype=torch.bfloat16) * 0.2)(P) * 0.3 - 2.0
        Dskip = (lambda *s: torch.randn(*s, dtype=torch.bfloat16) * 0.05)(D)
        return {
            "x": _w((lambda *s: torch.randn(*s, dtype=torch.bfloat16) * 0.05)(B, S, D)),
            "Lambda_re": _w(Lambda_re),
            "Lambda_im": _w(Lambda_im),
            "B_re": _w(B_re),
            "B_im": _w(B_im),
            "C_re": _w(C_re),
            "C_im": _w(C_im),
            "log_dt": _w(log_dt),
            "Dskip": _w(Dskip),
        }
    _A_in = _A_setup()

    def _B_setup():
        B, S, D = 1, 2048, 448
        return {
            "x": _w((lambda *s: torch.randn(*s, dtype=torch.bfloat16) * 0.05)(B, S, D)),
            "wqkv": _w((lambda *s: torch.randn(*s, dtype=torch.bfloat16) * 0.4)(D, 3 * D)),
            "wo": _w((lambda *s: torch.randn(*s, dtype=torch.bfloat16) * 0.05)(D, D)),
        }
    _B_in = _B_setup()

    return {
        "A_x": _A_in["x"],
        "A_Lambda_re": _A_in["Lambda_re"],
        "A_Lambda_im": _A_in["Lambda_im"],
        "A_B_re": _A_in["B_re"],
        "A_B_im": _A_in["B_im"],
        "A_C_re": _A_in["C_re"],
        "A_C_im": _A_in["C_im"],
        "A_log_dt": _A_in["log_dt"],
        "A_Dskip": _A_in["Dskip"],
        "B_x": _B_in["x"],
        "B_wqkv": _B_in["wqkv"],
        "B_wo": _B_in["wo"],
    }

def reference(A_x, A_Lambda_re, A_Lambda_im, A_B_re, A_B_im, A_C_re, A_C_im, A_log_dt, A_Dskip, B_x, B_wqkv, B_wo):
    def _A_ref(x, Lambda_re, Lambda_im, B_re, B_im, C_re, C_im, log_dt, Dskip):
        Bsz, L, H = x.shape
        Lam = Lambda_re + 1j * Lambda_im
        Bmat = B_re + 1j * B_im
        Cmat = C_re + 1j * C_im
        dt = torch.exp(log_dt)
        Lam_bar = torch.exp(dt * Lam)
        B_bar = ((Lam_bar - 1.0) / Lam)[:, None] * Bmat
        Bu = torch.einsum("bld,pd->blp", x + 0j, B_bar)
        h = torch.zeros_like(Bu[:, 0, :])
        hs = []
        for t in range(L):
            h = Lam_bar[None, :] * h + Bu[:, t, :]
            hs.append(h)
        hseq = torch.stack(hs, 1)
        y = 2.0 * torch.einsum("blp,dp->bld", hseq, Cmat).real + x * Dskip[None, None, :]
        return y

    def _B_ref(x, wqkv, wo):
        B, S, D = x.shape
        H = 16; Dh = D // H
        qkv = (lambda x, *d: x.permute(*d))((x @ wqkv).reshape(B, S, 3, H, Dh), 2, 0, 3, 1, 4)
        q, k, v = qkv[0], qkv[1], qkv[2]
        phi = lambda t: torch.where(t > 0, t + 1, torch.exp(t)) + 1e-6
        pq, pk = phi(q), phi(k)
        kv = torch.einsum("bhsd,bhse->bhde", pk, v)
        z = torch.einsum("bhsd->bhd", pk)
        num = torch.einsum("bhqd,bhde->bhqe", pq, kv)
        den = torch.einsum("bhqd,bhd->bhq", pq, z)[..., None] + 1e-6
        o = num / den
        return (lambda x, *d: x.permute(*d))(o, 0, 2, 1, 3).reshape(B, S, D) @ wo

    a = _A_ref(A_x, A_Lambda_re, A_Lambda_im, A_B_re, A_B_im, A_C_re, A_C_im, A_log_dt, A_Dskip)
    b = _B_ref(B_x, B_wqkv, B_wo)
    return torch.concatenate([a, b], axis=-1)
```

```python
class Asm:
    def __init__(self):
        self.l = []
        self.uid = 0
    def __call__(self, s=''):
        for x in s.split('\n'):
            self.l.append(x)
    def label(self, name):
        self.l.append(name + ':')
    def newlabel(self, base):
        self.uid += 1
        return f'L_{base}_{self.uid}'
    def text(self):
        return '\n'.join(self.l) + '\n'

def vr(b, n=1):
    return f'v{b}' if n == 1 else f'v[{b}:{b+n-1}]'
def ar(b, n=1):
    return f'a{b}' if n == 1 else f'a[{b}:{b+n-1}]'
def sr(b, n=1):
    return f's{b}' if n == 1 else f's[{b}:{b+n-1}]'

def kernel_header(a, name):
    a('.text')
    a(f'.globl {name}')
    a('.p2align 8')
    a(f'.type {name},@function')
    a(f'{name}:')

def kernel_desc(a, name, vgpr=256, sgpr=102, accum=256):
    a('.section .rodata,"a"')
    a('.p2align 6')
    a(f'.amdhsa_kernel {name}')
    a(f'  .amdhsa_next_free_vgpr {vgpr}')
    a(f'  .amdhsa_next_free_sgpr {sgpr}')
    a(f'  .amdhsa_accum_offset {accum}')
    a('  .amdhsa_group_segment_fixed_size 0')
    a('  .amdhsa_kernarg_size 120')
    a('  .amdhsa_user_sgpr_count 2')
    a('  .amdhsa_user_sgpr_kernarg_segment_ptr 1')
    a('  .amdhsa_system_sgpr_workgroup_id_x 1')
    a('  .amdhsa_float_denorm_mode_32 3')
    a('.end_amdhsa_kernel')

def srd(a, d, lo, nbytes):
    a(f's_mov_b32 s{d}, s{lo}')
    a(f's_and_b32 s{d+1}, s{lo+1}, 0xffff')
    a(f's_mov_b32 s{d+2}, {nbytes}')
    a(f's_mov_b32 s{d+3}, 0x00020000')

WS_EP   = 0x0
WS_EG   = 0x4000
WS_KVF  = 0x20000
WS_KVP  = 0x40000
WS_W2F  = 0x240000
WS_WOF  = 0x310000
WS_HF   = 0x400000
WS_OF   = 0x800000
WS_STAMP= 0xA00000
WS_SIZE = 0xB00000

P_X, P_LRE, P_LIM, P_BRE, P_BIM, P_CRE, P_CIM, P_LDT = 8, 10, 12, 14, 16, 18, 20, 22
P_DSK, P_BX, P_WQKV, P_WO, P_OUT, P_DBG, P_WS = 24, 26, 28, 30, 32, 34, 36

def load_kernargs(a):
    a('s_load_dwordx16 s[8:23], s[0:1], 0')
    a('s_load_dwordx8 s[24:31], s[0:1], 64')
    a('s_load_dwordx4 s[32:35], s[0:1], 96')
    a('s_load_dwordx2 s[36:37], s[0:1], 112')

LOG2E = 0x3fb8aa3b
INV2PI = 0x3e22f983
EPS6 = 0x358637bd
LCG_A = 0x9E3779B1
LCG_C = 0x7F4A7C15
```

```python
from common import *

S_W, S_C, S_S = 4, 5, 6
SRD_X, SRD_W, SRD_WS = 40, 44, 48
S_TAG, S_KOFF, S_XB, S_WB, S_LDSW, S_TH, S_SH = 52, 53, 54, 55, 56, 57, 58
S_T0, S_T1, S_T2, S_T3 = 59, 60, 61, 62
S_SPIN = 63

class Stamps:
    def __init__(self, a, on):
        self.a, self.on, self.n = a, on, 0
    def mark(self):
        if self.on:
            assert self.n < 10
            self.a(f's_memrealtime s[{80+2*self.n}:{81+2*self.n}]')
            self.n += 1
    def flush(self, kidx):
        if not self.on: return
        a = self.a
        a('s_waitcnt lgkmcnt(0)')
        a(f's_lshl_b32 s{S_T0}, s2, 2'); a(f's_add_u32 s{S_T0}, s{S_T0}, s{S_W}'); a(f's_lshl_b32 s{S_T0}, s{S_T0}, 6')
        a(f's_add_u32 s{S_T0}, s{S_T0}, {WS_STAMP + kidx*65536}')
        a('v_mov_b32 v2, 0')
        for i in range(self.n):
            a(f'v_mov_b32 v3, s{80+2*i}')
            a(f'buffer_store_dword v3, v2, s[{SRD_WS}:{SRD_WS+3}], s{S_T0} offen offset:{4*i}')

def read_tag(a, group_sgpr_off):
    a(f'v_mov_b32 v30, 0')
    a(f'buffer_load_dword v31, v30, s[{SRD_WS}:{SRD_WS+3}], s{group_sgpr_off} offen sc1')

def finish_tag(a):
    a('v_readfirstlane_b32 s%d, v31' % S_TAG)
    a('s_nop 3')
    a(f's_mul_i32 s{S_TAG}, s{S_TAG}, {LCG_A}')
    a(f's_add_u32 s{S_TAG}, s{S_TAG}, {LCG_C}')

def cmul(a, dr, di, ar_, ai, br, bi, t):
    a(f'v_mul_f32 v{dr}, v{ar_}, v{br}')
    a(f'v_mul_f32 v{di}, v{ar_}, v{bi}')
    a(f'v_fma_f32 v{dr}, -v{ai}, v{bi}, v{dr}')
    a(f'v_fmac_f32 v{di}, v{ai}, v{br}')

def csq(a, dr, di, ar_, ai):
    a(f'v_mul_f32 v{dr}, v{ar_}, v{ar_}')
    a(f'v_mul_f32 v{di}, v{ar_}, v{ai}')
    a(f'v_fma_f32 v{dr}, -v{ai}, v{ai}, v{dr}')
    a(f'v_add_f32 v{di}, v{di}, v{di}')

def lam_bar(a, vlre, vlim, vldt, dr, di, t0, t1, t2):
    a(f'v_lshlrev_b32 v{vlre}, 16, v{vlre}')
    a(f'v_lshlrev_b32 v{vlim}, 16, v{vlim}')
    a(f'v_lshlrev_b32 v{vldt}, 16, v{vldt}')
    a(f'v_mul_f32 v{t0}, {hex(LOG2E)}, v{vldt}')
    a(f'v_exp_f32 v{t0}, v{t0}')
    a('s_nop 0')
    a(f'v_cvt_pk_bf16_f32 v{t0}, v{t0}, v{t0}')
    a(f'v_and_b32 v{t0}, 0xffff0000, v{t0}')
    a(f'v_mul_f32 v{t1}, v{t0}, v{vlre}')
    a(f'v_mul_f32 v{t2}, v{t0}, v{vlim}')
    a(f'v_mul_f32 v{t1}, {hex(LOG2E)}, v{t1}')
    a(f'v_mul_f32 v{t2}, {hex(INV2PI)}, v{t2}')
    a(f'v_exp_f32 v{t1}, v{t1}')
    a(f'v_fract_f32 v{t2}, v{t2}')
    a(f'v_cos_f32 v{dr}, v{t2}')
    a(f'v_sin_f32 v{di}, v{t2}')
    a('s_nop 0')
    a(f'v_mul_f32 v{dr}, v{dr}, v{t1}')
    a(f'v_mul_f32 v{di}, v{di}, v{t1}')

EX_BASE = 98304

def role_A(a, opt):
    st = Stamps(a, opt.get('stamps'))
    XS, WSB = 0, 49152
    VA_X, VA_W, VD_X, VD_W = 2, 6, 10, 14
    LR, LI, NLI = 18, 19, 20
    L16R, L16I, L32R, L32I, L128R, L128I, PPR, PPI = 21, 22, 23, 24, 25, 26, 27, 28
    F0 = 32
    ACC = 64
    G = 128
    T = 192
    acc = lambda tt, comp, r=0: ACC + (tt*2+comp)*16 + r

    st.mark()
    srd(a, SRD_X, P_X, 2048*896)
    a(f's_and_b32 s{S_SH}, s{S_W}, 1'); a(f's_lshr_b32 s{S_TH}, s{S_W}, 1')
    a(f's_cmp_eq_u32 s{S_SH}, 0')
    a(f's_cselect_b32 s{SRD_W}, s{P_BRE}, s{P_BIM}')
    a(f's_cselect_b32 s{SRD_W+1}, s{P_BRE+1}, s{P_BIM+1}')
    a(f's_and_b32 s{SRD_W+1}, s{SRD_W+1}, 0xffff')
    a(f's_mov_b32 s{SRD_W+2}, {448*896}'); a(f's_mov_b32 s{SRD_W+3}, 0x00020000')
    a(f's_lshl_b32 s{S_T0}, s{S_S}, 7')
    read_tag(a, S_T0)
    a('v_and_b32 v29, 31, v1')
    a(f's_lshl_b32 s{S_T0}, s{S_S}, 6'); a(f's_lshl_b32 s{S_T1}, s{S_SH}, 5'); a(f's_add_u32 s{S_T0}, s{S_T0}, s{S_T1}')
    a(f'v_add_u32 v{T}, s{S_T0}, v29'); a(f'v_lshlrev_b32 v{T}, 1, v{T}')
    a(f'global_load_ushort v{T+1}, v{T}, s[{P_LRE}:{P_LRE+1}]')
    a(f'global_load_ushort v{T+2}, v{T}, s[{P_LIM}:{P_LIM+1}]')
    a(f'global_load_ushort v{T+3}, v{T}, s[{P_LDT}:{P_LDT+1}]')
    a(f'v_and_b32 v{T+4}, 7, v1'); a(f'v_lshrrev_b32 v{T+5}, 4, v1')
    a(f'v_xor_b32 v{T+6}, v{T+4}, v{T+5}'); a(f'v_lshlrev_b32 v{T+6}, 4, v{T+6}')
    a(f'v_xor_b32 v{T+7}, 64, v{T+6}')
    a(f'v_lshrrev_b32 v{T+8}, 5, v1'); a(f'v_lshlrev_b32 v{T+8}, 5, v{T+8}')
    a(f'v_bfe_u32 v{T+9}, v1, 3, 2'); a(f'v_add_u32 v{T+8}, v{T+8}, v{T+9}')
    a(f's_lshl_b32 s{S_T0}, s{S_TH}, 6'); a(f's_lshl_b32 s{S_T1}, s{S_SH}, 4'); a(f's_add_u32 s{S_T0}, s{S_T0}, s{S_T1}')
    a(f'v_add_u32 v{T+8}, s{S_T0}, v{T+8}')
    a(f's_movk_i32 s{S_T2}, 896')
    a(f'v_mul_lo_u32 v{T+8}, v{T+8}, s{S_T2}')
    for u in range(4):
        a(f'v_add_u32 v{VD_X+u}, v{T+8}, v{T+6+(u&1)}')
        if u: a(f'v_add_u32 v{VD_X+u}, {u*(4*896-1024)}, v{VD_X+u}')
    a(f'v_lshrrev_b32 v{T+8}, 3, v1'); a(f's_lshl_b32 s{S_T0}, s{S_TH}, 5'); a(f'v_add_u32 v{T+8}, s{S_T0}, v{T+8}')
    a(f'v_mul_lo_u32 v{T+8}, v{T+8}, s{S_T2}')
    for u in range(4):
        a(f'v_add_u32 v{VD_W+u}, v{T+8}, v{T+6+(u&1)}')
        if u: a(f'v_add_u32 v{VD_W+u}, {u*(8*896-1024)}, v{VD_W+u}')
    a(f's_mul_i32 s{S_XB}, s{S_C}, {128*896}')
    a(f's_mul_i32 s{S_WB}, s{S_S}, {64*896}')
    a(f's_lshl_b32 s{S_LDSW}, s{S_W}, 12')
    a(f's_add_u32 s{S_KOFF}, s{S_C}, s{S_S}')
    for sub in (14, 7, 7):
        a(f's_cmp_ge_u32 s{S_KOFF}, {sub}'); a(f's_cselect_b32 s{S_T0}, {sub}, 0'); a(f's_sub_u32 s{S_KOFF}, s{S_KOFF}, s{S_T0}')
    a(f's_lshl_b32 s{S_KOFF}, s{S_KOFF}, 7')

    def dma(slot):
        a(f's_add_u32 m0, s{S_LDSW}, {XS + slot*16384}')
        a(f's_add_u32 s{S_T0}, s{S_XB}, s{S_KOFF}')
        for u in range(4):
            a(f'buffer_load_dwordx4 v{VD_X+u}, s[{SRD_X}:{SRD_X+3}], s{S_T0} offen offset:{1024*u} lds')
        a(f's_add_u32 m0, s{S_LDSW}, {WSB + slot*16384}')
        a(f's_add_u32 s{S_T0}, s{S_WB}, s{S_KOFF}')
        for u in range(4):
            a(f'buffer_load_dwordx4 v{VD_W+u}, s[{SRD_W}:{SRD_W+3}], s{S_T0} offen offset:{1024*u} lds')
        a(f's_add_u32 s{S_KOFF}, s{S_KOFF}, 128'); a(f's_cmp_ge_u32 s{S_KOFF}, 896')
        a(f's_cselect_b32 s{S_T1}, 896, 0'); a(f's_sub_u32 s{S_KOFF}, s{S_KOFF}, s{S_T1}')
    dma(0); dma(1)

    a(f'v_lshrrev_b32 v{T+8}, 5, v1')
    a(f'v_bfe_u32 v{T+9}, v1, 1, 3')
    a(f'v_lshlrev_b32 v{T+10}, 7, v29')
    a(f's_lshl_b32 s{S_T0}, s{S_TH}, 13'); a(f's_lshl_b32 s{S_T1}, s{S_SH}, 13'); a(f's_add_u32 s{S_T1}, s{S_T1}, {WSB}')
    for j in range(4):
        a(f'v_add_u32 v{T+11}, {2*j}, v{T+8}'); a(f'v_xor_b32 v{T+11}, v{T+11}, v{T+9}')
        a(f'v_lshl_add_u32 v{T+11}, v{T+11}, 4, v{T+10}')
        a(f'v_add_u32 v{VA_X+j}, s{S_T0}, v{T+11}'); a(f'v_add_u32 v{VA_W+j}, s{S_T1}, v{T+11}')

    a('s_waitcnt vmcnt(16)')
    finish_tag(a)
    lam_bar(a, T+1, T+2, T+3, LR, LI, T+4, T+5, T+6)
    a(f'v_sub_f32 v{NLI}, 0, v{LI}')
    csq(a, T+4, T+5, LR, LI); csq(a, T+6, T+7, T+4, T+5); csq(a, T+4, T+5, T+6, T+7)
    csq(a, L16R, L16I, T+4, T+5); csq(a, L32R, L32I, L16R, L16I)
    csq(a, T+4, T+5, L32R, L32I)
    csq(a, L128R, L128I, T+4, T+5)
    cmul(a, T+6, T+7, T+4, T+5, L32R, L32I, None)
    a('v_cmp_lt_u32 vcc, 31, v1')
    a(f's_cmp_eq_u32 s{S_TH}, 0')
    lab = a.newlabel('pp'); lab2 = a.newlabel('ppd')
    a(f's_cbranch_scc0 {lab}')
    a(f'v_cndmask_b32 v{PPR}, 1.0, v{L32R}, vcc'); a(f'v_cndmask_b32 v{PPI}, 0, v{L32I}, vcc')
    a(f's_branch {lab2}')
    a.label(lab)
    a(f'v_cndmask_b32 v{PPR}, v{T+4}, v{T+6}, vcc'); a(f'v_cndmask_b32 v{PPI}, v{T+5}, v{T+7}, vcc')
    a.label(lab2)
    st.mark()

    def reads(slot, j, fs):
        b = F0 + 16*fs
        a(f'ds_read_b128 v[{b}:{b+3}], v{VA_X+j} offset:{slot*16384}')
        a(f'ds_read_b128 v[{b+8}:{b+11}], v{VA_W+j} offset:{slot*16384}')
        a(f'ds_read_b128 v[{b+12}:{b+15}], v{VA_W+j} offset:{slot*16384+4096}')
        a(f'ds_read_b128 v[{b+4}:{b+7}], v{VA_X+j} offset:{slot*16384+4096}')
    for i in range(7):
        slot = i % 3
        a(f's_waitcnt vmcnt({8 if i < 6 else 0})')
        a('s_barrier')
        if i == 0: st.mark()
        reads(slot, 0, 0)
        for ks in range(4):
            if ks < 3: reads(slot, ks+1, (ks+1) & 1)
            a(f's_waitcnt lgkmcnt({4 if ks < 3 else 0})')
            b = F0 + 16*(ks & 1)
            for tt in range(2):
                for comp in range(2):
                    c_in = '0' if (i == 0 and ks == 0) else vr(acc(tt, comp), 16)
                    a(f'v_mfma_f32_32x32x16_bf16 {vr(acc(tt,comp),16)}, {vr(b+4*tt,4)}, {vr(b+8+4*comp,4)}, {c_in}')
        if i + 2 <= 6: dma((i+2) % 3)
    st.mark()
    a('s_nop 7'); a('s_nop 7')

    E = [[T+0, T+1, T+2, T+3], [T+4, T+5, T+6, T+7]]
    cur = [(acc(0,0,0), acc(0,1,0)), (acc(1,0,0), acc(1,1,0))]
    for r in range(1, 16):
        nxt = []
        for tt in range(2):
            p = (r & 1)*2
            nxt.append((E[tt][p], E[tt][p+1]))
        for tt in range(2): a(f'v_fma_f32 v{nxt[tt][0]}, v{LR}, v{cur[tt][0]}, v{acc(tt,0,r)}')
        for tt in range(2): a(f'v_fma_f32 v{nxt[tt][1]}, v{LR}, v{cur[tt][1]}, v{acc(tt,1,r)}')
        for tt in range(2): a(f'v_fmac_f32 v{nxt[tt][0]}, v{NLI}, v{cur[tt][1]}')
        for tt in range(2): a(f'v_fmac_f32 v{nxt[tt][1]}, v{LI}, v{cur[tt][0]}')
        cur = nxt
    E0R, E0I = cur[0]; E1R, E1I = cur[1]
    assert (E0R, E1R) == (T+2, T+6)
    ELR, ELI = T+8, T+9
    a(f'v_fma_f32 v{ELR}, v{L16R}, v{E0R}, v{E1R}'); a(f'v_fma_f32 v{ELI}, v{L16R}, v{E0I}, v{E1I}')
    a(f'v_fma_f32 v{ELR}, -v{L16I}, v{E0I}, v{ELR}'); a(f'v_fmac_f32 v{ELI}, v{L16I}, v{E0R}')
    a(f'v_lshrrev_b32 v{T+10}, 5, v1')
    a(f's_lshl_b32 s{S_T0}, s{S_SH}, 2'); a(f's_lshl_b32 s{S_T1}, s{S_TH}, 1'); a(f's_add_u32 s{S_T0}, s{S_T0}, s{S_T1}')
    a(f'v_add_u32 v{T+10}, s{S_T0}, v{T+10}'); a(f'v_lshlrev_b32 v{T+10}, 8, v{T+10}')
    a(f'v_lshl_add_u32 v{T+10}, v29, 3, v{T+10}')
    a(f'v_add_u32 v{T+10}, {EX_BASE}, v{T+10}')
    a(f'ds_write_b64 v{T+10}, v[{ELR}:{ELI}]')
    a(f's_lshl_b32 s{S_T0}, s{S_SH}, 10'); a(f's_add_u32 s{S_T0}, s{S_T0}, {EX_BASE}')
    a(f'v_lshlrev_b32 v{T+11}, 3, v29'); a(f'v_add_u32 v{T+11}, s{S_T0}, v{T+11}')
    a('s_waitcnt lgkmcnt(0)')
    a('s_barrier')
    Q = T+12
    for q in range(4):
        a(f'ds_read_b64 v[{Q+2*q}:{Q+2*q+1}], v{T+11} offset:{256*q}')
    a('s_waitcnt lgkmcnt(0)')
    C2, C3, CW = T+20, T+22, T+24
    def cfma(dr, di, mr, mi, xr, xi, br, bi):
        a(f'v_fma_f32 v{dr}, v{mr}, v{xr}, v{br}'); a(f'v_fma_f32 v{di}, v{mr}, v{xi}, v{bi}')
        a(f'v_fma_f32 v{dr}, -v{mi}, v{xi}, v{dr}'); a(f'v_fmac_f32 v{di}, v{mi}, v{xr}')
    cfma(C2, C2+1, L32R, L32I, Q, Q+1, Q+2, Q+3)
    cfma(C3, C3+1, L32R, L32I, C2, C2+1, Q+4, Q+5)
    cfma(CW, CW+1, L32R, L32I, C3, C3+1, Q+6, Q+7)
    GV = T+28
    a(f'v_mov_b32 v{GV}, v{CW}'); a(f'v_mov_b32 v{GV+1}, s{S_TAG}'); a(f'v_mov_b32 v{GV+2}, v{CW+1}'); a(f'v_mov_b32 v{GV+3}, s{S_TAG}')
    VG = T+26
    a(f's_lshl_b32 s{S_T0}, s{S_SH}, 9'); a(f'v_lshlrev_b32 v{VG}, 4, v29'); a(f'v_add_u32 v{VG}, s{S_T0}, v{VG}')
    a(f's_lshl_b32 s{S_T2}, s{S_S}, 14'); a(f's_add_u32 s{S_T2}, s{S_T2}, {WS_EG}')
    a(f's_lshl_b32 s{S_T3}, s{S_C}, 10'); a(f's_add_u32 s{S_T3}, s{S_T3}, s{S_T2}')
    lab = a.newlabel('nopub')
    a(f's_cmp_eq_u32 s{S_TH}, 0'); a(f's_cbranch_scc0 {lab}')
    a('s_mov_b32 exec_hi, 0')
    a(f'buffer_store_dwordx4 v[{GV}:{GV+3}], v{VG}, s[{SRD_WS}:{SRD_WS+3}], s{S_T3} offen sc1')
    a('s_mov_b64 exec, -1')
    a.label(lab)
    st.mark()
    CINR, CINI = T+32, T+33
    a('v_cmp_lt_u32 vcc, 31, v1')
    lab = a.newlabel('cin'); lab2 = a.newlabel('cind')
    a(f's_cmp_eq_u32 s{S_TH}, 0'); a(f's_cbranch_scc0 {lab}')
    a(f'v_cndmask_b32 v{CINR}, 0, v{Q}, vcc'); a(f'v_cndmask_b32 v{CINI}, 0, v{Q+1}, vcc')
    a(f's_branch {lab2}')
    a.label(lab)
    a(f'v_cndmask_b32 v{CINR}, v{C2}, v{C3}, vcc'); a(f'v_cndmask_b32 v{CINI}, v{C2+1}, v{C3+1}, vcc')
    a.label(lab2)

    CR = [T+34, T+36]
    TMIN, TMAX = T+38, T+39
    a(f's_sub_u32 s{S_T3}, s{S_T3}, {15*1024}')
    a(f's_mov_b32 s{S_SPIN}, 0')
    lpoll = a.newlabel('poll'); ldone = a.newlabel('polldone')
    a(f'v_mov_b32 v{CR[1]}, 0'); a(f'v_mov_b32 v{CR[1]+1}, 0')
    a(f's_cmp_eq_u32 s{S_C}, 0'); a(f's_cbranch_scc1 {ldone}')
    a.label(lpoll)
    for jj in range(15):
        sk = a.newlabel('sk')
        a(f's_cmp_ge_u32 s{S_C}, {15-jj}'); a(f's_cbranch_scc0 {sk}')
        a(f's_add_u32 s{S_T0}, s{S_T3}, {jj*1024}')
        a(f'buffer_load_dwordx4 v[{G+4*jj}:{G+4*jj+3}], v{VG}, s[{SRD_WS}:{SRD_WS+3}], s{S_T0} offen sc1')
        a.label(sk)
    a(f'v_mov_b32 v{TMIN}, s{S_TAG}'); a(f'v_mov_b32 v{TMAX}, s{S_TAG}')
    a(f'v_mov_b32 v{CR[1]}, 0'); a(f'v_mov_b32 v{CR[1]+1}, 0')
    a('s_waitcnt vmcnt(0)')
    a(f'v_mov_b32 v{CR[0]}, 0'); a(f'v_mov_b32 v{CR[0]+1}, 0')
    for jj in range(15):
        sk = a.newlabel('hk')
        src = CR[jj & 1]; dst = CR[(jj+1) & 1]
        a(f's_cmp_ge_u32 s{S_C}, {15-jj}'); a(f's_cbranch_scc0 {sk}')
        g = G + 4*jj
        a(f'v_min3_u32 v{TMIN}, v{TMIN}, v{g+1}, v{g+3}'); a(f'v_max3_u32 v{TMAX}, v{TMAX}, v{g+1}, v{g+3}')
        cfma(dst, dst+1, L128R, L128I, src, src+1, g, g+2)
        a.label(sk)
    a(f'v_cmp_ne_u32 vcc, v{TMIN}, v{TMAX}')
    a(f's_add_u32 s{S_SPIN}, s{S_SPIN}, 1')
    a(f's_cmp_lt_u32 s{S_SPIN}, {opt.get("spin", 1<<20)}')
    lgo = a.newlabel('go')
    a(f's_cbranch_scc0 {ldone}')
    a(f's_cbranch_vccnz {lpoll}')
    a.label(ldone)
    lab = a.newlabel('noep')
    a(f's_cmp_eq_u32 s{S_C}, 15'); a(f's_cbranch_scc0 {lab}')
    a(f's_cmp_eq_u32 s{S_TH}, 0'); a(f's_cbranch_scc0 {lab}')
    a(f's_cmp_eq_u32 s{S_SH}, 0'); a(f's_cbranch_scc0 {lab}')
    a(f's_lshl_b32 s{S_T0}, s{S_S}, 7'); a(f'v_mov_b32 v{T+40}, 0'); a(f'v_mov_b32 v{T+41}, s{S_TAG}')
    a('s_mov_b64 exec, 1')
    a(f'buffer_store_dword v{T+41}, v{T+40}, s[{SRD_WS}:{SRD_WS+3}], s{S_T0} offen sc1')
    a('s_mov_b64 exec, -1')
    a.label(lab)
    st.mark()
    CF = CR[1]
    cfma(T+42, T+43, PPR, PPI, CF, CF+1, CINR, CINI)
    cfma(T+44, T+45, L16R, L16I, T+42, T+43, E0R, E0I)
    prev = [(T+42, T+43), (T+44, T+45)]
    for r in range(16):
        for tt in range(2): a(f'v_fmac_f32 v{acc(tt,0,r)}, v{LR}, v{prev[tt][0]}')
        for tt in range(2): a(f'v_fmac_f32 v{acc(tt,1,r)}, v{LR}, v{prev[tt][1]}')
        for tt in range(2): a(f'v_fmac_f32 v{acc(tt,0,r)}, v{NLI}, v{prev[tt][1]}')
        for tt in range(2): a(f'v_fmac_f32 v{acc(tt,1,r)}, v{LI}, v{prev[tt][0]}')
        prev = [(acc(0,0,r), acc(0,1,r)), (acc(1,0,r), acc(1,1,r))]
    a(f's_mul_i32 s{S_T0}, s{S_C}, 14'); a(f's_lshl_b32 s{S_T1}, s{S_S}, 1'); a(f's_add_u32 s{S_T0}, s{S_T0}, s{S_T1}')
    a(f's_add_u32 s{S_T0}, s{S_T0}, s{S_SH}'); a(f's_lshl_b32 s{S_T0}, s{S_T0}, 14')
    a(f's_lshl_b32 s{S_T1}, s{S_TH}, 13'); a(f's_add_u32 s{S_T0}, s{S_T0}, s{S_T1}'); a(f's_add_u32 s{S_T0}, s{S_T0}, {WS_HF}')
    a(f'v_lshrrev_b32 v{T+46}, 5, v1'); a(f'v_lshlrev_b32 v{T+46}, 12, v{T+46}')
    P = G
    n = 0
    flags = 'sc1' if opt.get('h_sc1') else ''
    for tt in range(2):
        for u in range(2):
            tb = 2*tt + u
            a(f'v_xor_b32 v{T+47+tb}, {4*tb}, v29'); a(f'v_lshl_add_u32 v{T+47+tb}, v{T+47+tb}, 4, v{T+46}')
            for comp in range(2):
                d = P + 4*n; n += 1
                for q in range(4):
                    r = 8*u + 2*q
                    a(f'v_cvt_pk_bf16_f32 v{d+q}, v{acc(tt,comp,r)}, v{acc(tt,comp,r+1)}')
                a(f'buffer_store_dwordx4 v[{d}:{d+3}], v{T+47+tb}, s[{SRD_WS}:{SRD_WS+3}], s{S_T0} offen offset:{tb*1024+comp*512} {flags}')
    st.mark()
    st.flush(0)
    a('s_endpgm')
```

```python
from common import *
from k1a import *

def phi(a, regs, tmp, s_l2e, s_eps):
    for b in range(0, len(regs), 4):
        rs = regs[b:b+4]
        for i, r in enumerate(rs): a(f'v_mul_f32 v{tmp+i}, s{s_l2e}, v{r}')
        for i, r in enumerate(rs): a(f'v_min_f32 v{tmp+i}, 0, v{tmp+i}')
        for i, r in enumerate(rs): a(f'v_exp_f32 v{tmp+i}, v{tmp+i}')
        for i, r in enumerate(rs): a(f'v_max_f32 v{r}, 0, v{r}')
        for i, r in enumerate(rs): a(f'v_add_f32 v{r}, v{r}, v{tmp+i}')
        for i, r in enumerate(rs): a(f'v_add_f32 v{r}, s{s_eps}, v{r}')

def role_B(a, opt):
    st = Stamps(a, opt.get('stamps') if opt.get('stamps') != 2 else 0)
    S_HP, S_HH = S_S, S_SH
    S_L2E, S_EPS = 64, 65
    XSL, WSL = 16384, 21504
    XS, WSB = 0, 3*16384
    KX = WSB + 3*WSL
    VA_X, VWR, VD_X, VD_W = 2, 6, 10, 14
    F0 = 24
    AK, AV, AQ = 64, 96, 128
    G = 160
    T = 224
    st.mark()
    srd(a, SRD_X, P_BX, 2048*896); srd(a, SRD_W, P_WQKV, 448*2688)
    a(f's_and_b32 s{S_HH}, s{S_W}, 1'); a(f's_lshr_b32 s{S_TH}, s{S_W}, 1')
    a(f's_add_u32 s{S_T0}, s{S_HP}, 8'); a(f's_lshl_b32 s{S_T0}, s{S_T0}, 7')
    read_tag(a, S_T0)
    a(f'v_and_b32 v{T+4}, 7, v1'); a(f'v_lshrrev_b32 v{T+5}, 4, v1')
    a(f'v_xor_b32 v{T+6}, v{T+4}, v{T+5}'); a(f'v_lshlrev_b32 v{T+6}, 4, v{T+6}'); a(f'v_xor_b32 v{T+7}, 64, v{T+6}')
    a(f'v_lshrrev_b32 v{T+8}, 3, v1'); a(f's_lshl_b32 s{S_T0}, s{S_W}, 5'); a(f'v_add_u32 v{T+8}, s{S_T0}, v{T+8}')
    a(f's_movk_i32 s{S_T2}, 896'); a(f'v_mul_lo_u32 v{T+8}, v{T+8}, s{S_T2}')
    for u in range(4):
        a(f'v_add_u32 v{VD_X+u}, v{T+8}, v{T+6+(u&1)}')
        if u: a(f'v_add_u32 v{VD_X+u}, {u*(8*896-1024)}, v{VD_X+u}')
    a(f'v_mul_u32_u24 v{T+8}, 37, v1'); a(f'v_lshrrev_b32 v{T+8}, 8, v{T+8}')
    a(f'v_mul_u32_u24 v{T+9}, 7, v{T+8}'); a(f'v_sub_u32 v{T+9}, v1, v{T+9}')
    a(f'v_and_b32 v{T+10}, 3, v{T+8}'); a(f'v_lshlrev_b32 v{T+10}, 2, v{T+10}'); a(f'v_lshrrev_b32 v{T+8}, 2, v{T+8}')
    a(f'v_add_u32 v{T+8}, v{T+8}, v{T+10}')
    a(f's_lshl_b32 s{S_T0}, s{S_W}, 4'); a(f'v_add_u32 v{T+8}, s{S_T0}, v{T+8}')
    a(f's_movk_i32 s{S_T2}, 2688'); a(f'v_mul_lo_u32 v{T+8}, v{T+8}, s{S_T2}')
    a(f'v_lshl_add_u32 v{VD_W}, v{T+9}, 4, v{T+8}')
    a(f'v_add_u32 v{VD_W+1}, {2*2688-896}, v{VD_W}')
    a(f's_mul_i32 s{S_XB}, s{S_C}, {128*896}')
    a(f's_mul_i32 s{S_WB}, s{S_HP}, 112')
    a(f's_lshl_b32 s{S_LDSW}, s{S_W}, 12')
    a(f's_mul_i32 s{S_T3+4}, s{S_W}, {16*112}')
    S_LW2 = S_T3 + 4
    a(f's_add_u32 s{S_KOFF}, s{S_C}, s{S_HP}')
    for sub in (14, 7, 7):
        a(f's_cmp_ge_u32 s{S_KOFF}, {sub}'); a(f's_cselect_b32 s{S_T0}, {sub}, 0'); a(f's_sub_u32 s{S_KOFF}, s{S_KOFF}, s{S_T0}')

    def dma(slot):
        a(f's_add_u32 m0, s{S_LDSW}, {XS + slot*XSL}')
        a(f's_lshl_b32 s{S_T0}, s{S_KOFF}, 7'); a(f's_add_u32 s{S_T0}, s{S_T0}, s{S_XB}')
        for u in range(4):
            a(f'buffer_load_dwordx4 v{VD_X+u}, s[{SRD_X}:{SRD_X+3}], s{S_T0} offen offset:{1024*u} lds')
        a(f's_mul_i32 s{S_T0}, s{S_KOFF}, {64*2688}'); a(f's_add_u32 s{S_T0}, s{S_T0}, s{S_WB}')
        a('s_mov_b32 exec_hi, 0x00ffffff')
        for part in range(3):
            a(f's_add_u32 m0, s{S_LW2}, {WSB + slot*WSL + part*7168}')
            if part: a(f's_add_u32 s{S_T0}, s{S_T0}, 896')
            else: a('s_nop 0')
            a(f'buffer_load_dwordx4 v{VD_W}, s[{SRD_W}:{SRD_W+3}], s{S_T0} offen lds')
            a(f'buffer_load_dwordx4 v{VD_W+1}, s[{SRD_W}:{SRD_W+3}], s{S_T0} offen offset:896 lds')
        a('s_mov_b32 exec_hi, -1')
        a(f's_add_u32 s{S_KOFF}, s{S_KOFF}, 1'); a(f's_cmp_ge_u32 s{S_KOFF}, 7')
        a(f's_cselect_b32 s{S_T1}, 7, 0'); a(f's_sub_u32 s{S_KOFF}, s{S_KOFF}, s{S_T1}')
    dma(0); dma(1)

    a('v_and_b32 v7, 31, v1')
    a(f'v_lshrrev_b32 v{T+8}, 5, v1'); a(f'v_bfe_u32 v{T+9}, v1, 1, 3'); a(f'v_lshlrev_b32 v{T+10}, 7, v7')
    a(f's_lshl_b32 s{S_T0}, s{S_TH}, 13')
    for j in range(4):
        a(f'v_add_u32 v{T+11}, {2*j}, v{T+8}'); a(f'v_xor_b32 v{T+11}, v{T+11}, v{T+9}')
        a(f'v_lshl_add_u32 v{T+11}, v{T+11}, 4, v{T+10}'); a(f'v_add_u32 v{VA_X+j}, s{S_T0}, v{T+11}')
    a(f'v_bfe_u32 v{T+8}, v1, 2, 2'); a(f'v_lshlrev_b32 v{T+8}, 2, v{T+8}')
    a(f'v_lshrrev_b32 v{T+9}, 5, v1'); a(f'v_lshl_add_u32 v{T+8}, v{T+9}, 1, v{T+8}')
    a(f'v_mul_u32_u24 v{T+8}, 112, v{T+8}')
    a(f'v_bfe_u32 v{T+9}, v1, 4, 1'); a(f'v_lshl_add_u32 v{T+8}, v{T+9}, 5, v{T+8}')
    a(f'v_and_b32 v{T+9}, 3, v1'); a(f'v_lshl_add_u32 v{T+8}, v{T+9}, 3, v{T+8}')
    a(f's_mul_i32 s{S_T0}, s{S_HH}, 56'); a(f's_add_u32 s{S_T0}, s{S_T0}, {WSB}'); a(f'v_add_u32 v{VWR}, s{S_T0}, v{T+8}')
    a(f's_mov_b32 s{S_L2E}, {hex(LOG2E)}'); a(f's_mov_b32 s{S_EPS}, {hex(EPS6)}')
    a('s_waitcnt vmcnt(20)')
    finish_tag(a)
    st.mark()

    def reads(slot, ks, fs):
        b = F0 + 20*fs
        a(f'ds_read_b128 v[{b}:{b+3}], v{VA_X+ks} offset:{slot*XSL}')
        for part in (1, 2, 0):
            for rd in range(2):
                d = b + 8 + 4*part + 2*rd
                a(f'ds_read_b64_tr_b16 v[{d}:{d+1}], v{VWR} offset:{slot*WSL + part*7168 + ks*1792 + rd*112}')
        a(f'ds_read_b128 v[{b+4}:{b+7}], v{VA_X+ks} offset:{slot*XSL+4096}')
    for i in range(7):
        slot = i % 3
        a(f's_waitcnt vmcnt({10 if i < 6 else 0})')
        a('s_barrier')
        if i == 0: st.mark()
        reads(slot, 0, 0)
        for ks in range(4):
            if ks < 3: reads(slot, ks+1, (ks+1) & 1)
            a(f's_waitcnt lgkmcnt({8 if ks < 3 else 0})')
            b = F0 + 20*(ks & 1)
            first = (i == 0 and ks == 0)
            for tt in range(2):
                x = vr(b+4*tt, 4)
                for ac, part in ((AK, 1), (AV, 2)):
                    d = vr(ac+16*tt, 16)
                    a(f'v_mfma_f32_32x32x16_bf16 {d}, {x}, {vr(b+8+4*part,4)}, {"0" if first else d}')
                d = vr(AQ+16*tt, 16)
                a(f'v_mfma_f32_32x32x16_bf16 {d}, {vr(b+8,4)}, {x}, {"0" if first else d}')
        if i + 2 <= 6: dma((i+2) % 3)
    st.mark()
    a('s_nop 7'); a('s_nop 7')

    phi(a, list(range(AK, AK+32)), T, S_L2E, S_EPS)
    PK, PV = 24, 40
    a('v_cmp_eq_u32 vcc, 28, v7')
    a(f'v_mov_b32 v{T}, 0x3f803f80')
    for tt in range(2):
        for q in range(8):
            a(f'v_cvt_pk_bf16_f32 v{PK+8*tt+q}, v{AK+16*tt+2*q}, v{AK+16*tt+2*q+1}')
            a(f'v_cvt_pk_bf16_f32 v{PV+8*tt+q}, v{AV+16*tt+2*q}, v{AV+16*tt+2*q+1}')
            a(f'v_cndmask_b32 v{PV+8*tt+q}, v{PV+8*tt+q}, v{T}, vcc')
    KV = AK
    a('s_nop 1')
    n = 0
    for tt in range(2):
        for ks in range(2):
            a(f'v_mfma_f32_32x32x16_bf16 {vr(KV,16)}, {vr(PK+8*tt+4*ks,4)}, {vr(PV+8*tt+4*ks,4)}, {"0" if n == 0 else vr(KV,16)}')
            n += 1
    for rp in range(4):
        a(f'v_mov_b32 v{G+4*rp+1}, s{S_TAG}'); a(f'v_mov_b32 v{G+4*rp+3}, s{S_TAG}')
    a(f'v_lshlrev_b32 v{T+1}, 4, v1')
    a(f's_lshl_b32 s{S_T0}, s{S_HH}, 12'); a(f's_add_u32 s{S_T0}, s{S_T0}, {KX}'); a(f'v_add_u32 v{T+2}, s{S_T0}, v{T+1}')
    a('s_nop 7'); a('s_nop 3')
    lab1 = a.newlabel('kvx1'); labd = a.newlabel('kvxd')
    a(f's_lshl_b32 s{S_T2}, s{S_HP}, 4'); a(f's_add_u32 s{S_T2}, s{S_T2}, s{S_C}'); a(f's_lshl_b32 s{S_T2}, s{S_T2}, 1'); a(f's_add_u32 s{S_T2}, s{S_T2}, s{S_HH}')
    a(f's_lshl_b32 s{S_T2}, s{S_T2}, 13'); a(f's_add_u32 s{S_T2}, s{S_T2}, {WS_KVP}')
    a(f's_cmp_eq_u32 s{S_TH}, 0'); a(f's_cbranch_scc0 {lab1}')
    for th in range(2):
        keep = KV + 8*th; give = KV + 8*(1-th)
        a(f'ds_write_b128 v{T+2}, v[{give}:{give+3}] offset:{th*2048}')
        a(f'ds_write_b128 v{T+2}, v[{give+4}:{give+7}] offset:{th*2048+1024}')
        a('s_waitcnt lgkmcnt(0)')
        a('s_barrier')
        a(f'ds_read_b128 v[{T+4}:{T+7}], v{T+2} offset:{(1-th)*2048}')
        a(f'ds_read_b128 v[{T+8}:{T+11}], v{T+2} offset:{(1-th)*2048+1024}')
        a('s_waitcnt lgkmcnt(0)')
        for q in range(8):
            a(f'v_add_f32 v{G+4*(q//2)+2*(q&1)}, v{keep+q}, v{T+4+q}')
        for rp in range(4):
            a(f'buffer_store_dwordx4 v[{G+4*rp}:{G+4*rp+3}], v{T+1}, s[{SRD_WS}:{SRD_WS+3}], s{S_T2} offen offset:{1024*rp} sc1') if th == 0 else None
        if th == 1:
            a(f's_add_u32 s{S_T2}, s{S_T2}, 4096')
            for rp in range(4):
                a(f'buffer_store_dwordx4 v[{G+4*rp}:{G+4*rp+3}], v{T+1}, s[{SRD_WS}:{SRD_WS+3}], s{S_T2} offen offset:{1024*rp} sc1')
        if th == 0:
            a(f's_branch {labd}'); a.label(lab1)
    a.label(labd)
    st.mark()

    phi(a, list(range(AQ, AQ+32)), T+4, S_L2E, S_EPS)
    PQ = 24
    a('v_cmp_gt_u32 vcc, 32, v1')
    for tt in range(2):
        for q in range(8):
            a(f'v_cvt_pk_bf16_f32 v{PQ+8*tt+q}, v{AQ+16*tt+2*q}, v{AQ+16*tt+2*q+1}')
        for q in (6, 7):
            a(f'v_cndmask_b32 v{PQ+8*tt+q}, 0, v{PQ+8*tt+q}, vcc')

    lnored = a.newlabel('nored')
    a(f's_cmp_eq_u32 s{S_W}, 0'); a(f's_cbranch_scc0 {lnored}')
    a(f's_lshl_b32 s{S_T2}, s{S_HP}, 18'); a(f's_lshl_b32 s{S_T0}, s{S_C}, 10'); a(f's_add_u32 s{S_T2}, s{S_T2}, s{S_T0}')
    a(f's_add_u32 s{S_T2}, s{S_T2}, {WS_KVP}')
    a(f's_mov_b32 s{S_SPIN}, 0')
    lp = a.newlabel('p1'); ld = a.newlabel('p1d')
    TMIN, TMAX = T+12, T+13
    a.label(lp)
    a(f's_mov_b32 s{S_T0}, s{S_T2}')
    for j in range(16):
        a(f'buffer_load_dwordx4 v[{G+4*j}:{G+4*j+3}], v{T+1}, s[{SRD_WS}:{SRD_WS+3}], s{S_T0} offen sc1')
        if j < 15: a(f's_add_u32 s{S_T0}, s{S_T0}, 16384')
    a(f'v_mov_b32 v{TMIN}, s{S_TAG}'); a(f'v_mov_b32 v{TMAX}, s{S_TAG}')
    a('s_waitcnt vmcnt(0)')
    for j in range(16):
        a(f'v_min3_u32 v{TMIN}, v{TMIN}, v{G+4*j+1}, v{G+4*j+3}'); a(f'v_max3_u32 v{TMAX}, v{TMAX}, v{G+4*j+1}, v{G+4*j+3}')
    a(f'v_cmp_ne_u32 vcc, v{TMIN}, v{TMAX}')
    a(f's_add_u32 s{S_SPIN}, s{S_SPIN}, 1'); a(f's_cmp_lt_u32 s{S_SPIN}, {opt.get("spin", 1<<20)}')
    a(f's_cbranch_scc0 {ld}')
    a(f's_cbranch_vccnz {lp}')
    a.label(ld)
    for j in range(1, 16):
        a(f'v_add_f32 v{G}, v{G}, v{G+4*j}'); a(f'v_add_f32 v{G+2}, v{G+2}, v{G+4*j+2}')
    a(f'v_cvt_pk_bf16_f32 v{T+14}, v{G}, v{G+2}'); a(f'v_mov_b32 v{T+15}, s{S_TAG}')
    a(f'v_lshlrev_b32 v{T+16}, 3, v1')
    a(f's_lshl_b32 s{S_T0}, s{S_HP}, 13'); a(f's_lshl_b32 s{S_T1}, s{S_C}, 9'); a(f's_add_u32 s{S_T0}, s{S_T0}, s{S_T1}'); a(f's_add_u32 s{S_T0}, s{S_T0}, {WS_KVF}')
    a(f'buffer_store_dwordx2 v[{T+14}:{T+15}], v{T+16}, s[{SRD_WS}:{SRD_WS+3}], s{S_T0} offen sc1')
    lab = a.newlabel('noepb')
    a(f's_cmp_eq_u32 s{S_C}, 15'); a(f's_cbranch_scc0 {lab}')
    a(f's_add_u32 s{S_T0}, s{S_HP}, 8'); a(f's_lshl_b32 s{S_T0}, s{S_T0}, 7'); a(f'v_mov_b32 v{T+17}, 0')
    a('s_mov_b64 exec, 1')
    a(f'buffer_store_dword v{T+15}, v{T+17}, s[{SRD_WS}:{SRD_WS+3}], s{S_T0} offen sc1')
    a('s_mov_b64 exec, -1')
    a.label(lab)
    a.label(lnored)
    st.mark()

    a(f'v_lshlrev_b32 v{T+16}, 3, v1')
    a(f's_lshl_b32 s{S_T2}, s{S_HP}, 13'); a(f's_lshl_b32 s{S_T0}, s{S_HH}, 12'); a(f's_add_u32 s{S_T2}, s{S_T2}, s{S_T0}'); a(f's_add_u32 s{S_T2}, s{S_T2}, {WS_KVF}')
    a(f's_mov_b32 s{S_SPIN}, 0')
    lp = a.newlabel('p2'); ld = a.newlabel('p2d')
    a.label(lp)
    for rp in range(8):
        a(f'buffer_load_dwordx2 v[{G+2*rp}:{G+2*rp+1}], v{T+16}, s[{SRD_WS}:{SRD_WS+3}], s{S_T2} offen offset:{512*rp} sc1')
    a(f'v_mov_b32 v{T+12}, s{S_TAG}'); a(f'v_mov_b32 v{T+13}, s{S_TAG}')
    a('s_waitcnt vmcnt(0)')
    for rp in range(0, 8, 2):
        a(f'v_min3_u32 v{T+12}, v{T+12}, v{G+2*rp+1}, v{G+2*rp+3}'); a(f'v_max3_u32 v{T+13}, v{T+13}, v{G+2*rp+1}, v{G+2*rp+3}')
    a(f'v_cmp_ne_u32 vcc, v{T+12}, v{T+13}')
    a(f's_add_u32 s{S_SPIN}, s{S_SPIN}, 1'); a(f's_cmp_lt_u32 s{S_SPIN}, {opt.get("spin", 1<<20)}')
    a(f's_cbranch_scc0 {ld}')
    a(f's_cbranch_vccnz {lp}')
    a.label(ld)
    KA = 40
    for rp in range(8): a(f'v_mov_b32 v{KA+rp}, v{G+2*rp}')
    st.mark()
    NUM = 64
    a('s_nop 1')
    for tt in range(2):
        for ks in range(2):
            d = vr(NUM+16*tt, 16)
            a(f'v_mfma_f32_32x32x16_bf16 {d}, {vr(KA+4*ks,4)}, {vr(PQ+8*tt+4*ks,4)}, {"0" if ks == 0 else d}')
    a(f's_lshl_b32 s{S_T2}, s{S_C}, 2'); a(f's_lshl_b32 s{S_T0}, s{S_TH}, 1'); a(f's_add_u32 s{S_T2}, s{S_T2}, s{S_T0}'); a(f's_lshl_b32 s{S_T2}, s{S_T2}, 4')
    a(f's_lshl_b32 s{S_T0}, s{S_HP}, 1'); a(f's_add_u32 s{S_T2}, s{S_T2}, s{S_T0}'); a(f's_add_u32 s{S_T2}, s{S_T2}, s{S_HH}')
    a(f's_lshl_b32 s{S_T2}, s{S_T2}, 11'); a(f's_add_u32 s{S_T2}, s{S_T2}, {WS_OF}')
    a('s_nop 7'); a('s_nop 3')
    flags = 'sc1' if opt.get('h_sc1') else ''
    for tt in range(2):
        nb = NUM + 16*tt
        a(f'v_mov_b32 v{T+4}, v{nb+12}'); a(f'v_mov_b32 v{T+5}, v{nb+12}'); a('s_nop 1')
        a(f'v_permlane32_swap_b32 v{T+4}, v{T+5}'); a('s_nop 1')
        a(f'v_add_f32 v{T+5}, s{S_EPS}, v{T+5}'); a(f'v_rcp_f32 v{T+5}, v{T+5}'); a('s_nop 0')
        for r in range(16): a(f'v_mul_f32 v{nb+r}, v{nb+r}, v{T+5}')
        OP = G + 8*tt
        for q in range(8): a(f'v_cvt_pk_bf16_f32 v{OP+q}, v{nb+2*q}, v{nb+2*q+1}')
        a('v_cmp_gt_u32 vcc, 32, v1'); a('s_nop 1')
        for q in (6, 7): a(f'v_cndmask_b32 v{OP+q}, 0, v{OP+q}, vcc')
        for ks in range(2):
            a(f'buffer_store_dwordx4 v[{OP+4*ks}:{OP+4*ks+3}], v{T+1}, s[{SRD_WS}:{SRD_WS+3}], s{S_T2} offen offset:{1024*ks} {flags}')
        if tt == 0: a(f's_add_u32 s{S_T2}, s{S_T2}, {16*2048}')
    st.mark()
    st.flush(0)
    a('s_endpgm')
```

```python
from common import *
from k1a import *

def role_P(a, opt):
    st = Stamps(a, False)
    st.mark()
    S_GW = 57
    SRD_CR, SRD_CI, SRD_WO = 40, 44, 64
    T = 192
    srd(a, SRD_CR, P_CRE, 448*896); srd(a, SRD_CI, P_CIM, 448*896); srd(a, SRD_WO, P_WO, 448*896)
    a(f's_lshl_b32 s{S_GW}, s{S_S}, 2'); a(f's_add_u32 s{S_GW}, s{S_GW}, s{S_W}')
    a(f'v_lshlrev_b32 v{T}, 1, v0')
    a(f'v_add_u32 v{T+1}, 256, v0'); a(f'v_min_u32 v{T+1}, 447, v{T+1}'); a(f'v_lshlrev_b32 v{T+1}, 1, v{T+1}')
    for h in range(2):
        a(f'global_load_ushort v{T+2+3*h}, v{T+h}, s[{P_LRE}:{P_LRE+1}]')
        a(f'global_load_ushort v{T+3+3*h}, v{T+h}, s[{P_LIM}:{P_LIM+1}]')
        a(f'global_load_ushort v{T+4+3*h}, v{T+h}, s[{P_LDT}:{P_LDT+1}]')
    a('v_and_b32 v2, 31, v1'); a('v_lshrrev_b32 v3, 5, v1')
    a(f's_movk_i32 s{S_T2}, 896')
    a(f'v_mul_lo_u32 v4, v2, s{S_T2}'); a('v_lshl_add_u32 v4, v3, 4, v4')
    CB = 64
    SI = 66 + 2
    def item_scalars(n):
        it, nt, rem = S_T0, S_T1, S_T3
        a(f's_add_u32 s{it}, s{S_GW}, {64*n}')
        a(f's_mul_i32 s{nt}, s{it}, 2341'); a(f's_lshr_b32 s{nt}, s{nt}, 16')
        a(f's_mul_i32 s{rem}, s{nt}, 28'); a(f's_sub_u32 s{rem}, s{it}, s{rem}')
        b = SI + 3*n
        a(f's_mul_i32 s{b}, s{nt}, {32*896}'); a(f's_lshl_b32 s{b+1}, s{rem}, 5'); a(f's_add_u32 s{b}, s{b}, s{b+1}')
        a(f's_lshl_b32 s{b+1}, s{rem}, 7')
        a(f's_mul_i32 s{b+2}, s{nt}, 56'); a(f's_lshr_b32 s{it}, s{rem}, 1'); a(f's_lshl_b32 s{it}, s{it}, 2')
        a(f's_add_u32 s{b+2}, s{b+2}, s{it}'); a(f's_and_b32 s{it}, s{rem}, 1'); a(f's_add_u32 s{b+2}, s{b+2}, s{it}')
        a(f's_lshl_b32 s{b+2}, s{b+2}, 10'); a(f's_add_u32 s{b+2}, s{b+2}, {WS_W2F}')
    lskip6 = a.newlabel('p6')
    for n in range(7):
        if n == 6:
            a(f's_cmp_ge_u32 s{S_GW}, 8'); a(f's_cbranch_scc1 {lskip6}')
        item_scalars(n)
        a(f'buffer_load_dwordx4 v[{CB+8*n}:{CB+8*n+3}], v4, s[{SRD_CR}:{SRD_CR+3}], s{SI+3*n} offen')
        a(f'buffer_load_dwordx4 v[{CB+8*n+4}:{CB+8*n+7}], v4, s[{SRD_CI}:{SRD_CI+3}], s{SI+3*n} offen')
    a.label(lskip6)
    a('s_waitcnt vmcnt(12)')
    a('s_waitcnt vmcnt(12)')
    for h in range(2):
        lre, lim, ldt = T+2+3*h, T+3+3*h, T+4+3*h
        lr, li = T+10, T+11
        lam_bar(a, lre, lim, ldt, lr, li, T+12, T+13, T+14)
        a(f'v_add_f32 v{lr}, -1.0, v{lr}')
        a(f'v_mul_f32 v{T+12}, v{lre}, v{lre}'); a(f'v_fmac_f32 v{T+12}, v{lim}, v{lim}')
        a(f'v_rcp_f32 v{T+12}, v{T+12}')
        a(f'v_mul_f32 v{T+16}, v{lr}, v{lre}'); a(f'v_fmac_f32 v{T+16}, v{li}, v{lim}')
        a(f'v_mul_f32 v{T+17}, v{li}, v{lre}'); a(f'v_fma_f32 v{T+17}, -v{lr}, v{lim}, v{T+17}')
        a(f'v_add_f32 v{T+12}, v{T+12}, v{T+12}')
        a(f'v_mul_f32 v{T+16}, v{T+16}, v{T+12}'); a(f'v_mul_f32 v{T+17}, v{T+17}, v{T+12}')
        a(f'v_lshlrev_b32 v{T+15}, 3, v0')
        a(f'ds_write_b64 v{T+15}, v[{T+16}:{T+17}] offset:{2048*h}')
        a('s_nop 0')
    a('s_waitcnt lgkmcnt(0)')
    a('s_barrier')
    a('v_lshlrev_b32 v5, 1, v2'); a(f'v_mul_u32_u24 v6, {4*896}, v3'); a('v_add_u32 v5, v5, v6')
    a(f's_and_b32 s{S_T0}, s{S_GW}, 1')
    a('v_mov_b32 v6, v5')
    lab = a.newlabel('pz')
    a(f's_cmp_eq_u32 s{S_T0}, 0'); a(f's_cbranch_scc1 {lab}')
    a('v_cmp_lt_u32 vcc, 31, v1'); a('v_mov_b32 v7, 0x40000000'); a('s_nop 0'); a('v_cndmask_b32 v6, v5, v7, vcc')
    a.label(lab)
    a('s_waitcnt vmcnt(0)')
    WB = 128
    SO = 90
    for n in range(7):
        it, nt, ks_ = S_T0, S_T1, S_T3
        a(f's_add_u32 s{it}, s{S_GW}, {64*n}')
        a(f's_lshr_b32 s{nt}, s{it}, 5'); a(f's_and_b32 s{ks_}, s{it}, 31')
        a(f's_lshl_b32 s{SO+n}, s{it}, 10'); a(f's_add_u32 s{SO+n}, s{SO+n}, {WS_WOF}')
        a(f's_lshr_b32 s{it}, s{ks_}, 1'); a(f's_mul_i32 s{it}, s{it}, 28'); a(f's_and_b32 s{ks_}, s{ks_}, 1'); a(f's_lshl_b32 s{ks_}, s{ks_}, 4')
        a(f's_add_u32 s{it}, s{it}, s{ks_}'); a(f's_mul_i32 s{it}, s{it}, 896'); a(f's_lshl_b32 s{nt}, s{nt}, 6'); a(f's_add_u32 s{it}, s{it}, s{nt}')
        for j in range(8):
            off = ((j//4)*8 + j % 4)*896
            a(f's_add_u32 s{nt}, s{it}, {off}')
            a(f'buffer_load_ushort v{WB+8*n+j}, v{5 if j < 4 else 6}, s[{SRD_WO}:{SRD_WO+3}], s{nt} offen')
    a('v_lshlrev_b32 v8, 6, v3')
    a('v_lshlrev_b32 v9, 4, v1')
    FB = 32
    OB = 16
    for n in range(7):
        if n == 6:
            lab6 = a.newlabel('q6')
            a(f's_cmp_ge_u32 s{S_GW}, 8'); a(f's_cbranch_scc1 {lab6}')
        b = SI + 3*n
        a(f'v_add_u32 v10, s{b+1}, v8')
        for q in range(4): a(f'ds_read_b128 v[{FB+4*q}:{FB+4*q+3}], v10 offset:{16*q}')
        a('s_waitcnt lgkmcnt(0)')
        for jd in range(4):
            w0, w1 = [], []
            for h in range(2):
                j = 2*jd + h
                cr, ci = 24 + 2*h, 25 + 2*h
                if h == 0:
                    a(f'v_lshlrev_b32 v{cr}, 16, v{CB+8*n+jd}'); a(f'v_lshlrev_b32 v{ci}, 16, v{CB+8*n+4+jd}')
                else:
                    a(f'v_and_b32 v{cr}, 0xffff0000, v{CB+8*n+jd}'); a(f'v_and_b32 v{ci}, 0xffff0000, v{CB+8*n+4+jd}')
                fr, fi = FB + 2*j, FB + 2*j + 1
                a(f'v_mul_f32 v{28+h}, v{cr}, v{fr}'); a(f'v_fma_f32 v{28+h}, -v{ci}, v{fi}, v{28+h}')
                a(f'v_mul_f32 v{30+h}, -v{cr}, v{fi}') if False else None
                a(f'v_mul_f32 v{30+h}, v{cr}, v{fi}'); a(f'v_fmac_f32 v{30+h}, v{ci}, v{fr}')
            a(f'v_cvt_pk_bf16_f32 v{OB+jd}, v28, v29')
            a(f'v_cvt_pk_bf16_f32 v{OB+4+jd}, v30, v31')
            a(f'v_xor_b32 v{OB+4+jd}, 0x80008000, v{OB+4+jd}')
        a(f'buffer_store_dwordx4 v[{OB}:{OB+3}], v9, s[{SRD_WS}:{SRD_WS+3}], s{b+2} offen')
        a(f'buffer_store_dwordx4 v[{OB+4}:{OB+7}], v9, s[{SRD_WS}:{SRD_WS+3}], s{b+2} offen offset:2048')
        a('s_nop 1')
        if n == 6: a.label(lab6)
    a('s_waitcnt vmcnt(0)')
    for n in range(7):
        for q in range(4):
            a(f'v_lshl_or_b32 v{WB+8*n+q}, v{WB+8*n+2*q+1}, 16, v{WB+8*n+2*q}') if q else a(f'v_lshl_or_b32 v{WB+8*n}, v{WB+8*n+1}, 16, v{WB+8*n}')
        a(f'buffer_store_dwordx4 v[{WB+8*n}:{WB+8*n+3}], v9, s[{SRD_WS}:{SRD_WS+3}], s{SO+n} offen')
    st.mark()
    st.flush(0)
    a('s_endpgm')
```

```python
from common import *
from k1a import Stamps, S_W, S_C, S_S, SRD_WS, S_T0, S_T1, S_T2, S_T3

SRD_X, SRD_OUT = 40, 44
S_MH, S_NH, S_KC, S_LW = 52, 53, 54, 55
S_HB, S_WB2, S_OB = 56, 57, 58

def out_store(a, acc, col_off_sgpr, flags=''):
    for mt in range(2):
        for r in range(16):
            row = 32*mt + (r//4)*8 + r % 4
            a(f's_add_u32 s{S_T0}, s{col_off_sgpr}, {row*3584}')
            a(f'buffer_store_dword v{acc+16*mt+r}, v20, s[{SRD_OUT}:{SRD_OUT+3}], s{S_T0} offen {flags}')

def k2_common(a):
    srd(a, SRD_OUT, P_OUT, 2048*896*4)
    a(f's_lshr_b32 s{S_MH}, s{S_W}, 1'); a(f's_and_b32 s{S_NH}, s{S_W}, 1')
    a('v_and_b32 v2, 31, v1'); a('v_lshrrev_b32 v3, 5, v1')
    a('v_lshlrev_b32 v4, 4, v1')
    a(f'v_mul_u32_u24 v20, {4*3584}, v3'); a('v_lshl_add_u32 v20, v2, 2, v20')

def role_K2A(a, opt):
    st = Stamps(a, opt.get('stamps'), 7)
    st.mark()
    ACC = 32
    FR = 8
    FR = 64
    XD = 96
    k2_common(a)
    srd(a, SRD_X, P_X, 2048*896)
    a(f's_lshl_b32 s{S_T0}, s{S_S}, 6'); a(f's_lshl_b32 s{S_T1}, s{S_NH}, 5'); a(f's_add_u32 s{S_T0}, s{S_T0}, s{S_T1}')
    a(f'v_add_u32 v5, s{S_T0}, v2'); a('v_lshlrev_b32 v5, 1, v5')
    a(f'global_load_ushort v6, v5, s[{P_DSK}:{P_DSK+1}]')
    a(f's_lshl_b32 s{S_T1}, s{S_C}, 7'); a(f's_lshl_b32 s{S_T2}, s{S_MH}, 6'); a(f's_add_u32 s{S_T1}, s{S_T1}, s{S_T2}')
    a(f's_mul_i32 s{S_OB}, s{S_T1}, 3584'); a(f's_lshl_b32 s{S_T2}, s{S_T0}, 2'); a(f's_add_u32 s{S_OB}, s{S_OB}, s{S_T2}')
    a(f's_mul_i32 s{S_T1}, s{S_T1}, 896'); a(f's_lshl_b32 s{S_T0}, s{S_T0}, 1'); a(f's_add_u32 s{S_T1}, s{S_T1}, s{S_T0}')
    a(f'v_mul_u32_u24 v7, {4*896}, v3'); a('v_lshl_add_u32 v7, v2, 1, v7')
    for mt in range(2):
        for r in range(16):
            row = 32*mt + (r//4)*8 + r % 4
            a(f's_add_u32 s{S_T0}, s{S_T1}, {row*896}')
            a(f'buffer_load_ushort v{XD+16*mt+r}, v7, s[{SRD_X}:{SRD_X+3}], s{S_T0} offen')
    a(f's_lshl_b32 s{S_KC}, s{S_S}, 1')
    a(f's_mul_i32 s{S_HB}, s{S_C}, {14*16384}'); a(f's_lshl_b32 s{S_LW}, s{S_W}, 12'); a(f's_add_u32 s{S_HB}, s{S_HB}, s{S_LW}')
    a(f's_add_u32 s{S_HB}, s{S_HB}, {WS_HF}')
    a(f's_lshl_b32 s{S_T0}, s{S_S}, 1'); a(f's_add_u32 s{S_T0}, s{S_T0}, s{S_NH}'); a(f's_mul_i32 s{S_WB2}, s{S_T0}, {56*1024}')
    a(f's_add_u32 s{S_WB2}, s{S_WB2}, {WS_W2F}')
    def issue(g):
        slot = g % 3
        for h in range(2):
            i = 2*g + h
            a(f's_add_u32 m0, s{S_LW}, {slot*32768 + h*16384}')
            a(f's_lshl_b32 s{S_T0}, s{S_KC}, 14'); a(f's_add_u32 s{S_T0}, s{S_T0}, s{S_HB}')
            for u in range(4):
                a(f'buffer_load_dwordx4 v4, s[{SRD_WS}:{SRD_WS+3}], s{S_T0} offen offset:{1024*u} lds')
            a(f's_lshl_b32 s{S_T0}, s{S_KC}, 12'); a(f's_add_u32 s{S_T0}, s{S_T0}, s{S_WB2}')
            for ks in range(4):
                f = i*4 + ks
                a(f'buffer_load_dwordx4 a[{4*f}:{4*f+3}], v4, s[{SRD_WS}:{SRD_WS+3}], s{S_T0} offen offset:{1024*ks}')
            a(f's_add_u32 s{S_KC}, s{S_KC}, 1'); a(f's_cmp_ge_u32 s{S_KC}, 14'); a(f's_cselect_b32 s{S_T1}, 14, 0'); a(f's_sub_u32 s{S_KC}, s{S_KC}, s{S_T1}')
    issue(0); issue(1)
    a('v_lshrrev_b32 v14, 4, v1')
    a('v_bfe_u32 v15, v1, 2, 2')
    a('v_and_b32 v16, 3, v1')
    a('v_and_b32 v17, 1, v14'); a('v_lshlrev_b32 v17, 1, v17'); a('v_lshrrev_b32 v18, 1, v16'); a('v_add_u32 v17, v17, v18')
    a('v_lshrrev_b32 v18, 1, v14'); a('v_lshl_add_u32 v18, v18, 3, v15')
    a('v_lshlrev_b32 v19, 2, v17')
    a('v_and_b32 v16, 1, v16'); a('v_lshlrev_b32 v16, 3, v16'); a('v_lshl_add_u32 v16, v17, 10, v16')
    a(f's_lshl_b32 s{S_T0}, s{S_MH}, 13'); a(f'v_add_u32 v16, s{S_T0}, v16')
    for rd in range(2):
        a(f'v_add_u32 v21, {4*rd}, v18'); a('v_xor_b32 v21, v21, v19'); a(f'v_lshl_add_u32 v{10+rd}, v21, 4, v16')
        a(f'v_add_u32 v{12+rd}, 0x10000, v{10+rd}')
    a('s_waitcnt vmcnt(32)')
    a('v_lshlrev_b32 v6, 16, v6')
    for p in range(16):
        r0, r1 = XD + 2*p, XD + 2*p + 1
        a(f'v_lshlrev_b32 v{r0}, 16, v{r0}'); a(f'v_lshlrev_b32 v{r1}, 16, v{r1}')
        a(f'v_mul_f32 v{r0}, v{r0}, v6'); a(f'v_mul_f32 v{r1}, v{r1}, v6')
        a(f'v_cvt_pk_bf16_f32 v{r0}, v{r0}, v{r1}')
        a(f'v_and_b32 v{ACC+2*p+1}, 0xffff0000, v{r0}'); a(f'v_lshlrev_b32 v{ACC+2*p}, 16, v{r0}')
    st.mark()
    def reads(slot, h, ks, fs):
        base = slot*32768 + h*16384 + ks*256
        va = 10
        if base >= 65536 - 4096 - 1024: va, base = 12, base - 65536
        if base < 0: va, base = 10, base + 65536
        b = FR + 8*fs
        for mt in range(2):
            for rd in range(2):
                a(f'ds_read_b64_tr_b16 v[{b+4*mt+2*rd}:{b+4*mt+2*rd+1}], v{va+rd} offset:{base+4096*mt}')
    for g in range(7):
        slot = g % 3
        a(f's_waitcnt vmcnt({16 if g < 6 else 0})')
        a('s_barrier')
        if g == 0: st.mark()
        steps = [(h, ks) for h in range(2) for ks in range(4)]
        reads(slot, 0, 0, 0)
        for n, (h, ks) in enumerate(steps):
            if n < 7: reads(slot, *steps[n+1], (n+1) & 1)
            a(f's_waitcnt lgkmcnt({4 if n < 7 else 0})')
            f = (2*g + h)*4 + ks
            b = FR + 8*(n & 1)
            for mt in range(2):
                a(f'v_mfma_f32_32x32x16_bf16 {vr(ACC+16*mt,16)}, {vr(b+4*mt,4)}, {ar(4*f,4)}, {vr(ACC+16*mt,16)}')
        if g + 2 <= 6: issue(g+2)
    st.mark()
    a('s_nop 7'); a('s_nop 7')
    out_store(a, ACC, S_OB)
    st.mark()
    st.flush(1)
    a('s_endpgm')

def role_K2B(a, opt):
    st = Stamps(a, opt.get('stamps') if opt.get('stamps') != 2 else 0, 12)
    st.mark()
    ACC = 32; FR = 64
    k2_common(a)
    a(f's_lshl_b32 s{S_T1}, s{S_C}, 7'); a(f's_lshl_b32 s{S_T2}, s{S_MH}, 6'); a(f's_add_u32 s{S_T1}, s{S_T1}, s{S_T2}')
    a(f's_mul_i32 s{S_OB}, s{S_T1}, 3584')
    a(f's_lshl_b32 s{S_T0}, s{S_S}, 1'); a(f's_add_u32 s{S_T0}, s{S_T0}, s{S_NH}')
    a(f's_lshl_b32 s{S_T2}, s{S_T0}, 7'); a(f's_add_u32 s{S_OB}, s{S_OB}, s{S_T2}'); a(f's_add_u32 s{S_OB}, s{S_OB}, {448*4}')
    a(f's_lshl_b32 s{S_WB2}, s{S_T0}, 15'); a(f's_add_u32 s{S_WB2}, s{S_WB2}, {WS_WOF}')
    a(f's_lshl_b32 s{S_HB}, s{S_C}, 2'); a(f's_add_u32 s{S_HB}, s{S_HB}, s{S_W}'); a(f's_lshl_b32 s{S_HB}, s{S_HB}, 15'); a(f's_add_u32 s{S_HB}, s{S_HB}, {WS_OF}')
    a(f's_lshl_b32 s{S_LW}, s{S_W}, 15')
    a(f's_and_b32 s{S_KC}, s{S_S}, 3')
    def issue(g):
        a(f's_lshl_b32 s{S_T2}, s{S_KC}, 13')
        for h in range(2):
            a(f's_add_u32 m0, s{S_LW}, {g*8192 + h*4096}')
            a(f's_add_u32 s{S_T0}, s{S_T2}, s{S_HB}')
            if h: a(f's_add_u32 s{S_T0}, s{S_T0}, 4096')
            for u in range(4):
                a(f'buffer_load_dwordx4 v4, s[{SRD_WS}:{SRD_WS+3}], s{S_T0} offen offset:{1024*u} lds')
            a(f's_add_u32 s{S_T0}, s{S_T2}, s{S_WB2}')
            if h: a(f's_add_u32 s{S_T0}, s{S_T0}, 4096')
            for u in range(4):
                f = g*8 + h*4 + u
                a(f'buffer_load_dwordx4 a[{4*f}:{4*f+3}], v4, s[{SRD_WS}:{SRD_WS+3}], s{S_T0} offen offset:{1024*u}')
        a(f's_add_u32 s{S_KC}, s{S_KC}, 1'); a(f's_and_b32 s{S_KC}, s{S_KC}, 3')
    issue(0); issue(1); issue(2)
    a(f's_lshl_b32 s{S_T0}, s{S_MH}, 16'); a(f'v_add_u32 v10, s{S_T0}, v4')
    def reads(i, fs):
        b = FR + 8*fs
        for mt in range(2):
            a(f'ds_read_b128 v[{b+4*mt}:{b+4*mt+3}], v10 offset:{mt*32768 + i*1024}')
    for g in range(4):
        a(f's_waitcnt vmcnt({32 if g < 2 else (16 if g == 2 else 0)})')
        a('s_barrier')
        if g == 0: st.mark()
        reads(8*g, 0)
        for n in range(8):
            i = 8*g + n
            if n < 7: reads(i+1, (n+1) & 1)
            a(f's_waitcnt lgkmcnt({2 if n < 7 else 0})')
            b = FR + 8*(n & 1)
            for mt in range(2):
                cin = '0' if i == 0 else vr(ACC+16*mt, 16)
                a(f'v_mfma_f32_32x32x16_bf16 {vr(ACC+16*mt,16)}, {vr(b+4*mt,4)}, {ar(4*i,4)}, {cin}')
        if g == 0: issue(3)
    st.mark()
    a('s_nop 7'); a('s_nop 7')
    out_store(a, ACC, S_OB)
    st.mark()
    st.flush(1)
    a('s_endpgm')
```

```python
import sys
from common import *
from k1a import *
from k1p import role_P
from k2 import role_K2A, role_K2B
try:
    from k1b import role_B
except ImportError:
    role_B = None

HDR = '''; Kernarg layout (120 bytes, ptrs only, base s[0:1]): d_in[0..11], d_out, d_debug, d_ws
'''

def entry(a, name):
    kernel_header(a, name)
    load_kernargs(a)
    a('s_cmp_ge_u32 s2, 256')
    a(f's_cbranch_scc1 L_{name}_exit')
    a('v_and_b32 v1, 63, v0')
    a('v_lshrrev_b32 v2, 6, v0')
    a(f's_and_b32 s3, s2, 7')
    a(f's_lshr_b32 s7, s2, 3')
    a(f'v_readfirstlane_b32 s{S_W}, v2')
    a(f's_and_b32 s{S_C}, s3, 3'); a(f's_lshl_b32 s{S_C}, s{S_C}, 2'); a(f's_and_b32 s{S_S}, s7, 3'); a(f's_add_u32 s{S_C}, s{S_C}, s{S_S}')
    a(f's_lshr_b32 s{S_S}, s7, 2')
    a('s_waitcnt lgkmcnt(0)')
    srd(a, SRD_WS, P_WS, WS_SIZE)

def build(opt):
    a = Asm()
    a(HDR.rstrip())
    a('; @launch kernel=s5la_k1_kernel grid=(256,1,1) block=(256,1,1) lds=131072')
    if not opt.get('only_k1'):
        a('; @launch kernel=s5la_k2_kernel grid=(256,1,1) block=(256,1,1) lds=131072')
    a('.amdgcn_target "amdgcn-amd-amdhsa--gfx950"')
    n = 's5la_k1_kernel'
    entry(a, n)
    a('s_cmp_ge_u32 s3, 4'); a('s_cbranch_scc1 L_k1_B')
    a(f's_cmp_eq_u32 s{S_S}, 7'); a('s_cbranch_scc1 L_k1_P')
    role_A(a, opt)
    a.label('L_k1_P')
    a(f's_mov_b32 s{S_S}, s{S_C}')
    role_P(a, opt)
    a.label('L_k1_B')
    if role_B and not opt.get('noB'): role_B(a, opt)
    a.label(f'L_{n}_exit')
    a('s_endpgm')
    n2 = 's5la_k2_kernel'
    entry(a, n2)
    a(f's_cmp_eq_u32 s{S_S}, 7'); a(f's_cbranch_scc1 L_{n2}_exit')
    a('s_cmp_ge_u32 s3, 4'); a('s_cbranch_scc1 L_k2_B')
    role_K2A(a, opt)
    a.label('L_k2_B')
    role_K2B(a, opt)
    a.label(f'L_{n2}_exit')
    a('s_endpgm')
    kernel_desc(a, n, vgpr=256, accum=256)
    kernel_desc(a, n2, vgpr=352, accum=128)
    return a.text()

if __name__ == '__main__':
    opt = {}
    out = sys.argv[1]
    for kv in sys.argv[2:]:
        k, _, v = kv.partition('=')
        opt[k] = int(v) if v else 1
    open(out, 'w').write(build(opt))
```

```python
from common import *

S_W, S_C, S_S = 4, 5, 6
SRD_X, SRD_W, SRD_WS = 40, 44, 48
S_TAG, S_KOFF, S_XB, S_WB, S_LDSW, S_TH, S_SH = 52, 53, 54, 55, 56, 57, 58
S_T0, S_T1, S_T2, S_T3 = 59, 60, 61, 62
S_SPIN = 63

class Stamps:
    def __init__(self, a, on, base=0):
        self.a, self.on, self.n, self.base = a, on, 0, base
    def mark(self):
        if self.on:
            assert self.n < 10
            self.a(f's_memrealtime s[{80+2*self.n}:{81+2*self.n}]')
            self.n += 1
    def flush(self, kidx):
        if not self.on: return
        a = self.a
        a('s_waitcnt lgkmcnt(0)')
        if self.on == 2:
            a(f's_mov_b32 s{S_T0}, s{P_DBG}'); a(f's_mov_b32 s{S_T1}, s{P_DBG+1}')
            if kidx == 1:
                a(f's_sub_u32 s{S_T0}, s{S_T0}, 512'); a(f's_subb_u32 s{S_T1}, s{S_T1}, 0')
            a(f's_mov_b32 s68, s{S_T0}'); a(f's_mov_b32 s69, s{S_T1}')
            a('v_mov_b32 v2, 0')
            a('s_mov_b64 exec, 1')
            base = self.base
            a(f's_not_b32 s{S_T0}, s80'); a(f'v_mov_b32 v3, s{S_T0}')
            a(f'global_atomic_umax v2, v3, s[68:69] offset:{4*base}')
            for i in range(1, self.n):
                if base + i < 16:
                    a(f'v_mov_b32 v3, s{80+2*i}')
                    a(f'global_atomic_umax v2, v3, s[68:69] offset:{4*(base+i)}')
            return
        a(f's_lshl_b32 s{S_T0}, s2, 2'); a(f's_add_u32 s{S_T0}, s{S_T0}, s{S_W}'); a(f's_lshl_b32 s{S_T0}, s{S_T0}, 6')
        a(f's_add_u32 s{S_T0}, s{S_T0}, {WS_STAMP + kidx*65536}')
        a('v_mov_b32 v2, 0')
        for i in range(self.n):
            a(f'v_mov_b32 v3, s{80+2*i}')
            a(f'buffer_store_dword v3, v2, s[{SRD_WS}:{SRD_WS+3}], s{S_T0} offen offset:{4*i}')

def read_tag(a, group_sgpr_off):
    a(f'v_mov_b32 v30, 0')
    a(f'buffer_load_dword v31, v30, s[{SRD_WS}:{SRD_WS+3}], s{group_sgpr_off} offen sc1')

def finish_tag(a):
    a('v_readfirstlane_b32 s%d, v31' % S_TAG)
    a('s_nop 3')
    a(f's_mul_i32 s{S_TAG}, s{S_TAG}, {LCG_A}')
    a(f's_add_u32 s{S_TAG}, s{S_TAG}, {LCG_C}')

def cmul(a, dr, di, ar_, ai, br, bi, t):
    a(f'v_mul_f32 v{dr}, v{ar_}, v{br}')
    a(f'v_mul_f32 v{di}, v{ar_}, v{bi}')
    a(f'v_fma_f32 v{dr}, -v{ai}, v{bi}, v{dr}')
    a(f'v_fmac_f32 v{di}, v{ai}, v{br}')

def csq(a, dr, di, ar_, ai):
    a(f'v_mul_f32 v{dr}, v{ar_}, v{ar_}')
    a(f'v_mul_f32 v{di}, v{ar_}, v{ai}')
    a(f'v_fma_f32 v{dr}, -v{ai}, v{ai}, v{dr}')
    a(f'v_add_f32 v{di}, v{di}, v{di}')

def lam_bar(a, vlre, vlim, vldt, dr, di, t0, t1, t2):
    a(f'v_lshlrev_b32 v{vlre}, 16, v{vlre}')
    a(f'v_lshlrev_b32 v{vlim}, 16, v{vlim}')
    a(f'v_lshlrev_b32 v{vldt}, 16, v{vldt}')
    a(f'v_mul_f32 v{t0}, {hex(LOG2E)}, v{vldt}')
    a(f'v_exp_f32 v{t0}, v{t0}')
    a('s_nop 0')
    a(f'v_cvt_pk_bf16_f32 v{t0}, v{t0}, v{t0}')
    a(f'v_and_b32 v{t0}, 0xffff0000, v{t0}')
    a(f'v_mul_f32 v{t1}, v{t0}, v{vlre}')
    a(f'v_mul_f32 v{t2}, v{t0}, v{vlim}')
    a(f'v_mul_f32 v{t1}, {hex(LOG2E)}, v{t1}')
    a(f'v_mul_f32 v{t2}, {hex(INV2PI)}, v{t2}')
    a(f'v_exp_f32 v{t1}, v{t1}')
    a(f'v_fract_f32 v{t2}, v{t2}')
    a(f'v_cos_f32 v{dr}, v{t2}')
    a(f'v_sin_f32 v{di}, v{t2}')
    a('s_nop 0')
    a(f'v_mul_f32 v{dr}, v{dr}, v{t1}')
    a(f'v_mul_f32 v{di}, v{di}, v{t1}')

EX_BASE = 98304

def role_A(a, opt):
    st = Stamps(a, opt.get('stamps'))
    XS, WSB = 0, 49152
    VA_X, VA_W, VD_X, VD_W = 2, 6, 10, 14
    LR, LI, NLI = 18, 19, 20
    L16R, L16I, L32R, L32I, L128R, L128I, PPR, PPI = 21, 22, 23, 24, 25, 26, 27, 28
    F0 = 32
    ACC = 64
    G = 128
    T = 192
    acc = lambda tt, comp, r=0: ACC + (tt*2+comp)*16 + r

    st.mark()
    srd(a, SRD_X, P_X, 2048*896)
    a(f's_and_b32 s{S_SH}, s{S_W}, 1'); a(f's_lshr_b32 s{S_TH}, s{S_W}, 1')
    a(f's_cmp_eq_u32 s{S_SH}, 0')
    a(f's_cselect_b32 s{SRD_W}, s{P_BRE}, s{P_BIM}')
    a(f's_cselect_b32 s{SRD_W+1}, s{P_BRE+1}, s{P_BIM+1}')
    a(f's_and_b32 s{SRD_W+1}, s{SRD_W+1}, 0xffff')
    a(f's_mov_b32 s{SRD_W+2}, {448*896}'); a(f's_mov_b32 s{SRD_W+3}, 0x00020000')
    a(f's_lshl_b32 s{S_T0}, s{S_S}, 7')
    read_tag(a, S_T0)
    a('v_and_b32 v29, 31, v1')
    a(f's_lshl_b32 s{S_T0}, s{S_S}, 6'); a(f's_lshl_b32 s{S_T1}, s{S_SH}, 5'); a(f's_add_u32 s{S_T0}, s{S_T0}, s{S_T1}')
    a(f'v_add_u32 v{T}, s{S_T0}, v29'); a(f'v_lshlrev_b32 v{T}, 1, v{T}')
    a(f'global_load_ushort v{T+1}, v{T}, s[{P_LRE}:{P_LRE+1}]')
    a(f'global_load_ushort v{T+2}, v{T}, s[{P_LIM}:{P_LIM+1}]')
    a(f'global_load_ushort v{T+3}, v{T}, s[{P_LDT}:{P_LDT+1}]')
    a(f'v_and_b32 v{T+4}, 7, v1'); a(f'v_lshrrev_b32 v{T+5}, 4, v1')
    a(f'v_xor_b32 v{T+6}, v{T+4}, v{T+5}'); a(f'v_lshlrev_b32 v{T+6}, 4, v{T+6}')
    a(f'v_xor_b32 v{T+7}, 64, v{T+6}')
    a(f'v_lshrrev_b32 v{T+8}, 5, v1'); a(f'v_lshlrev_b32 v{T+8}, 5, v{T+8}')
    a(f'v_bfe_u32 v{T+9}, v1, 3, 2'); a(f'v_add_u32 v{T+8}, v{T+8}, v{T+9}')
    a(f's_lshl_b32 s{S_T0}, s{S_TH}, 6'); a(f's_lshl_b32 s{S_T1}, s{S_SH}, 4'); a(f's_add_u32 s{S_T0}, s{S_T0}, s{S_T1}')
    a(f'v_add_u32 v{T+8}, s{S_T0}, v{T+8}')
    a(f's_movk_i32 s{S_T2}, 896')
    a(f'v_mul_lo_u32 v{T+8}, v{T+8}, s{S_T2}')
    for u in range(4):
        a(f'v_add_u32 v{VD_X+u}, v{T+8}, v{T+6+(u&1)}')
        if u: a(f'v_add_u32 v{VD_X+u}, {u*(4*896-1024)}, v{VD_X+u}')
    a(f'v_lshrrev_b32 v{T+8}, 3, v1'); a(f's_lshl_b32 s{S_T0}, s{S_TH}, 5'); a(f'v_add_u32 v{T+8}, s{S_T0}, v{T+8}')
    a(f'v_mul_lo_u32 v{T+8}, v{T+8}, s{S_T2}')
    for u in range(4):
        a(f'v_add_u32 v{VD_W+u}, v{T+8}, v{T+6+(u&1)}')
        if u: a(f'v_add_u32 v{VD_W+u}, {u*(8*896-1024)}, v{VD_W+u}')
    a(f's_mul_i32 s{S_XB}, s{S_C}, {128*896}')
    a(f's_mul_i32 s{S_WB}, s{S_S}, {64*896}')
    a(f's_lshl_b32 s{S_LDSW}, s{S_W}, 12')
    a(f's_add_u32 s{S_KOFF}, s{S_C}, s{S_S}')
    for sub in (14, 7, 7):
        a(f's_cmp_ge_u32 s{S_KOFF}, {sub}'); a(f's_cselect_b32 s{S_T0}, {sub}, 0'); a(f's_sub_u32 s{S_KOFF}, s{S_KOFF}, s{S_T0}')
    a(f's_lshl_b32 s{S_KOFF}, s{S_KOFF}, 7')

    def dma(slot):
        a(f's_add_u32 m0, s{S_LDSW}, {XS + slot*16384}')
        a(f's_add_u32 s{S_T0}, s{S_XB}, s{S_KOFF}')
        for u in range(4):
            a(f'buffer_load_dwordx4 v{VD_X+u}, s[{SRD_X}:{SRD_X+3}], s{S_T0} offen offset:{1024*u} lds')
        a(f's_add_u32 m0, s{S_LDSW}, {WSB + slot*16384}')
        a(f's_add_u32 s{S_T0}, s{S_WB}, s{S_KOFF}')
        for u in range(4):
            a(f'buffer_load_dwordx4 v{VD_W+u}, s[{SRD_W}:{SRD_W+3}], s{S_T0} offen offset:{1024*u} lds')
        a(f's_add_u32 s{S_KOFF}, s{S_KOFF}, 128'); a(f's_cmp_ge_u32 s{S_KOFF}, 896')
        a(f's_cselect_b32 s{S_T1}, 896, 0'); a(f's_sub_u32 s{S_KOFF}, s{S_KOFF}, s{S_T1}')
    dma(0); dma(1)

    a(f'v_lshrrev_b32 v{T+8}, 5, v1')
    a(f'v_bfe_u32 v{T+9}, v1, 1, 3')
    a(f'v_lshlrev_b32 v{T+10}, 7, v29')
    a(f's_lshl_b32 s{S_T0}, s{S_TH}, 13'); a(f's_lshl_b32 s{S_T1}, s{S_SH}, 13'); a(f's_add_u32 s{S_T1}, s{S_T1}, {WSB}')
    for j in range(4):
        a(f'v_add_u32 v{T+11}, {2*j}, v{T+8}'); a(f'v_xor_b32 v{T+11}, v{T+11}, v{T+9}')
        a(f'v_lshl_add_u32 v{T+11}, v{T+11}, 4, v{T+10}')
        a(f'v_add_u32 v{VA_X+j}, s{S_T0}, v{T+11}'); a(f'v_add_u32 v{VA_W+j}, s{S_T1}, v{T+11}')

    a('s_waitcnt vmcnt(16)')
    finish_tag(a)
    lam_bar(a, T+1, T+2, T+3, LR, LI, T+4, T+5, T+6)
    a(f'v_sub_f32 v{NLI}, 0, v{LI}')
    csq(a, T+4, T+5, LR, LI); csq(a, T+6, T+7, T+4, T+5); csq(a, T+4, T+5, T+6, T+7)
    csq(a, L16R, L16I, T+4, T+5); csq(a, L32R, L32I, L16R, L16I)
    csq(a, T+4, T+5, L32R, L32I)
    csq(a, L128R, L128I, T+4, T+5)
    cmul(a, T+6, T+7, T+4, T+5, L32R, L32I, None)
    a('v_cmp_lt_u32 vcc, 31, v1')
    a(f's_cmp_eq_u32 s{S_TH}, 0')
    lab = a.newlabel('pp'); lab2 = a.newlabel('ppd')
    a(f's_cbranch_scc0 {lab}')
    a(f'v_cndmask_b32 v{PPR}, 1.0, v{L32R}, vcc'); a(f'v_cndmask_b32 v{PPI}, 0, v{L32I}, vcc')
    a(f's_branch {lab2}')
    a.label(lab)
    a(f'v_cndmask_b32 v{PPR}, v{T+4}, v{T+6}, vcc'); a(f'v_cndmask_b32 v{PPI}, v{T+5}, v{T+7}, vcc')
    a.label(lab2)
    st.mark()

    def reads(slot, j, fs):
        b = F0 + 16*fs
        a(f'ds_read_b128 v[{b}:{b+3}], v{VA_X+j} offset:{slot*16384}')
        a(f'ds_read_b128 v[{b+8}:{b+11}], v{VA_W+j} offset:{slot*16384}')
        a(f'ds_read_b128 v[{b+12}:{b+15}], v{VA_W+j} offset:{slot*16384+4096}')
        a(f'ds_read_b128 v[{b+4}:{b+7}], v{VA_X+j} offset:{slot*16384+4096}')
    for i in range(7):
        slot = i % 3
        a(f's_waitcnt vmcnt({8 if i < 6 else 0})')
        a('s_barrier')
        if i == 0: st.mark()
        reads(slot, 0, 0)
        for ks in range(4):
            if ks < 3: reads(slot, ks+1, (ks+1) & 1)
            a(f's_waitcnt lgkmcnt({4 if ks < 3 else 0})')
            b = F0 + 16*(ks & 1)
            for tt in range(2):
                for comp in range(2):
                    c_in = '0' if (i == 0 and ks == 0) else vr(acc(tt, comp), 16)
                    a(f'v_mfma_f32_32x32x16_bf16 {vr(acc(tt,comp),16)}, {vr(b+4*tt,4)}, {vr(b+8+4*comp,4)}, {c_in}')
        if i + 2 <= 6: dma((i+2) % 3)
    st.mark()
    a('s_nop 7'); a('s_nop 7')

    E = [[T+0, T+1, T+2, T+3], [T+4, T+5, T+6, T+7]]
    cur = [(acc(0,0,0), acc(0,1,0)), (acc(1,0,0), acc(1,1,0))]
    for r in range(1, 16):
        nxt = []
        for tt in range(2):
            p = (r & 1)*2
            nxt.append((E[tt][p], E[tt][p+1]))
        for tt in range(2): a(f'v_fma_f32 v{nxt[tt][0]}, v{LR}, v{cur[tt][0]}, v{acc(tt,0,r)}')
        for tt in range(2): a(f'v_fma_f32 v{nxt[tt][1]}, v{LR}, v{cur[tt][1]}, v{acc(tt,1,r)}')
        for tt in range(2): a(f'v_fmac_f32 v{nxt[tt][0]}, v{NLI}, v{cur[tt][1]}')
        for tt in range(2): a(f'v_fmac_f32 v{nxt[tt][1]}, v{LI}, v{cur[tt][0]}')
        cur = nxt
    E0R, E0I = cur[0]; E1R, E1I = cur[1]
    assert (E0R, E1R) == (T+2, T+6)
    ELR, ELI = T+8, T+9
    a(f'v_fma_f32 v{ELR}, v{L16R}, v{E0R}, v{E1R}'); a(f'v_fma_f32 v{ELI}, v{L16R}, v{E0I}, v{E1I}')
    a(f'v_fma_f32 v{ELR}, -v{L16I}, v{E0I}, v{ELR}'); a(f'v_fmac_f32 v{ELI}, v{L16I}, v{E0R}')
    a(f'v_lshrrev_b32 v{T+10}, 5, v1')
    a(f's_lshl_b32 s{S_T0}, s{S_SH}, 2'); a(f's_lshl_b32 s{S_T1}, s{S_TH}, 1'); a(f's_add_u32 s{S_T0}, s{S_T0}, s{S_T1}')
    a(f'v_add_u32 v{T+10}, s{S_T0}, v{T+10}'); a(f'v_lshlrev_b32 v{T+10}, 8, v{T+10}')
    a(f'v_lshl_add_u32 v{T+10}, v29, 3, v{T+10}')
    a(f'v_add_u32 v{T+10}, {EX_BASE}, v{T+10}')
    a(f'ds_write_b64 v{T+10}, v[{ELR}:{ELI}]')
    a(f's_lshl_b32 s{S_T0}, s{S_SH}, 10'); a(f's_add_u32 s{S_T0}, s{S_T0}, {EX_BASE}')
    a(f'v_lshlrev_b32 v{T+11}, 3, v29'); a(f'v_add_u32 v{T+11}, s{S_T0}, v{T+11}')
    a('s_waitcnt lgkmcnt(0)')
    a('s_barrier')
    Q = T+12
    for q in range(4):
        a(f'ds_read_b64 v[{Q+2*q}:{Q+2*q+1}], v{T+11} offset:{256*q}')
    a('s_waitcnt lgkmcnt(0)')
    C2, C3, CW = T+20, T+22, T+24
    def cfma(dr, di, mr, mi, xr, xi, br, bi):
        a(f'v_fma_f32 v{dr}, v{mr}, v{xr}, v{br}'); a(f'v_fma_f32 v{di}, v{mr}, v{xi}, v{bi}')
        a(f'v_fma_f32 v{dr}, -v{mi}, v{xi}, v{dr}'); a(f'v_fmac_f32 v{di}, v{mi}, v{xr}')
    cfma(C2, C2+1, L32R, L32I, Q, Q+1, Q+2, Q+3)
    cfma(C3, C3+1, L32R, L32I, C2, C2+1, Q+4, Q+5)
    cfma(CW, CW+1, L32R, L32I, C3, C3+1, Q+6, Q+7)
    GV = T+28
    a(f'v_mov_b32 v{GV}, v{CW}'); a(f'v_mov_b32 v{GV+1}, s{S_TAG}'); a(f'v_mov_b32 v{GV+2}, v{CW+1}'); a(f'v_mov_b32 v{GV+3}, s{S_TAG}')
    VG = T+26
    a(f's_lshl_b32 s{S_T0}, s{S_SH}, 9'); a(f'v_lshlrev_b32 v{VG}, 4, v29'); a(f'v_add_u32 v{VG}, s{S_T0}, v{VG}')
    a(f's_lshl_b32 s{S_T2}, s{S_S}, 14'); a(f's_add_u32 s{S_T2}, s{S_T2}, {WS_EG}')
    a(f's_lshl_b32 s{S_T3}, s{S_C}, 10'); a(f's_add_u32 s{S_T3}, s{S_T3}, s{S_T2}')
    lab = a.newlabel('nopub')
    a(f's_cmp_eq_u32 s{S_TH}, 0'); a(f's_cbranch_scc0 {lab}')
    a('s_mov_b32 exec_hi, 0')
    a(f'buffer_store_dwordx4 v[{GV}:{GV+3}], v{VG}, s[{SRD_WS}:{SRD_WS+3}], s{S_T3} offen sc1')
    a('s_mov_b64 exec, -1')
    a.label(lab)
    st.mark()
    CINR, CINI = T+32, T+33
    a('v_cmp_lt_u32 vcc, 31, v1')
    lab = a.newlabel('cin'); lab2 = a.newlabel('cind')
    a(f's_cmp_eq_u32 s{S_TH}, 0'); a(f's_cbranch_scc0 {lab}')
    a(f'v_cndmask_b32 v{CINR}, 0, v{Q}, vcc'); a(f'v_cndmask_b32 v{CINI}, 0, v{Q+1}, vcc')
    a(f's_branch {lab2}')
    a.label(lab)
    a(f'v_cndmask_b32 v{CINR}, v{C2}, v{C3}, vcc'); a(f'v_cndmask_b32 v{CINI}, v{C2+1}, v{C3+1}, vcc')
    a.label(lab2)

    CR = [T+34, T+36]
    TMIN, TMAX = T+38, T+39
    a(f's_sub_u32 s{S_T3}, s{S_T3}, {15*1024}')
    a(f's_mov_b32 s{S_SPIN}, 0')
    lpoll = a.newlabel('poll'); ldone = a.newlabel('polldone')
    a(f'v_mov_b32 v{CR[1]}, 0'); a(f'v_mov_b32 v{CR[1]+1}, 0')
    a(f's_cmp_eq_u32 s{S_C}, 0'); a(f's_cbranch_scc1 {ldone}')
    a.label(lpoll)
    for jj in range(15):
        sk = a.newlabel('sk')
        a(f's_cmp_ge_u32 s{S_C}, {15-jj}'); a(f's_cbranch_scc0 {sk}')
        a(f's_add_u32 s{S_T0}, s{S_T3}, {jj*1024}')
        a(f'buffer_load_dwordx4 v[{G+4*jj}:{G+4*jj+3}], v{VG}, s[{SRD_WS}:{SRD_WS+3}], s{S_T0} offen sc1')
        a.label(sk)
    a(f'v_mov_b32 v{TMIN}, s{S_TAG}'); a(f'v_mov_b32 v{TMAX}, s{S_TAG}')
    a(f'v_mov_b32 v{CR[1]}, 0'); a(f'v_mov_b32 v{CR[1]+1}, 0')
    a('s_waitcnt vmcnt(0)')
    a(f'v_mov_b32 v{CR[0]}, 0'); a(f'v_mov_b32 v{CR[0]+1}, 0')
    for jj in range(15):
        sk = a.newlabel('hk')
        src = CR[jj & 1]; dst = CR[(jj+1) & 1]
        a(f's_cmp_ge_u32 s{S_C}, {15-jj}'); a(f's_cbranch_scc0 {sk}')
        g = G + 4*jj
        a(f'v_min3_u32 v{TMIN}, v{TMIN}, v{g+1}, v{g+3}'); a(f'v_max3_u32 v{TMAX}, v{TMAX}, v{g+1}, v{g+3}')
        cfma(dst, dst+1, L128R, L128I, src, src+1, g, g+2)
        a.label(sk)
    a(f'v_cmp_ne_u32 vcc, v{TMIN}, v{TMAX}')
    a(f's_add_u32 s{S_SPIN}, s{S_SPIN}, 1')
    a(f's_cmp_lt_u32 s{S_SPIN}, {opt.get("spin", 1<<20)}')
    lgo = a.newlabel('go')
    a(f's_cbranch_scc0 {ldone}')
    a(f's_cbranch_vccnz {lpoll}')
    a.label(ldone)
    lab = a.newlabel('noep')
    a(f's_cmp_eq_u32 s{S_C}, 15'); a(f's_cbranch_scc0 {lab}')
    a(f's_cmp_eq_u32 s{S_TH}, 0'); a(f's_cbranch_scc0 {lab}')
    a(f's_cmp_eq_u32 s{S_SH}, 0'); a(f's_cbranch_scc0 {lab}')
    a(f's_lshl_b32 s{S_T0}, s{S_S}, 7'); a(f'v_mov_b32 v{T+40}, 0'); a(f'v_mov_b32 v{T+41}, s{S_TAG}')
    a('s_mov_b64 exec, 1')
    a(f'buffer_store_dword v{T+41}, v{T+40}, s[{SRD_WS}:{SRD_WS+3}], s{S_T0} offen sc1')
    a('s_mov_b64 exec, -1')
    a.label(lab)
    st.mark()
    CF = CR[1]
    cfma(T+42, T+43, PPR, PPI, CF, CF+1, CINR, CINI)
    cfma(T+44, T+45, L16R, L16I, T+42, T+43, E0R, E0I)
    prev = [(T+42, T+43), (T+44, T+45)]
    for r in range(16):
        for tt in range(2): a(f'v_fmac_f32 v{acc(tt,0,r)}, v{LR}, v{prev[tt][0]}')
        for tt in range(2): a(f'v_fmac_f32 v{acc(tt,1,r)}, v{LR}, v{prev[tt][1]}')
        for tt in range(2): a(f'v_fmac_f32 v{acc(tt,0,r)}, v{NLI}, v{prev[tt][1]}')
        for tt in range(2): a(f'v_fmac_f32 v{acc(tt,1,r)}, v{LI}, v{prev[tt][0]}')
        prev = [(acc(0,0,r), acc(0,1,r)), (acc(1,0,r), acc(1,1,r))]
    a(f's_mul_i32 s{S_T0}, s{S_C}, 14'); a(f's_lshl_b32 s{S_T1}, s{S_S}, 1'); a(f's_add_u32 s{S_T0}, s{S_T0}, s{S_T1}')
    a(f's_add_u32 s{S_T0}, s{S_T0}, s{S_SH}'); a(f's_lshl_b32 s{S_T0}, s{S_T0}, 14')
    a(f's_lshl_b32 s{S_T1}, s{S_TH}, 13'); a(f's_add_u32 s{S_T0}, s{S_T0}, s{S_T1}'); a(f's_add_u32 s{S_T0}, s{S_T0}, {WS_HF}')
    a(f'v_lshrrev_b32 v{T+46}, 5, v1'); a(f'v_lshlrev_b32 v{T+46}, 12, v{T+46}')
    P = G
    n = 0
    flags = 'sc1' if opt.get('h_sc1') else ''
    for tt in range(2):
        for u in range(2):
            tb = 2*tt + u
            a(f'v_xor_b32 v{T+47+tb}, {4*tb}, v29'); a(f'v_lshl_add_u32 v{T+47+tb}, v{T+47+tb}, 4, v{T+46}')
            for comp in range(2):
                d = P + 4*n; n += 1
                for q in range(4):
                    r = 8*u + 2*q
                    a(f'v_cvt_pk_bf16_f32 v{d+q}, v{acc(tt,comp,r)}, v{acc(tt,comp,r+1)}')
                a(f'buffer_store_dwordx4 v[{d}:{d+3}], v{T+47+tb}, s[{SRD_WS}:{SRD_WS+3}], s{S_T0} offen offset:{tb*1024+comp*512} {flags}')
    st.mark()
    st.flush(0)
    a('s_endpgm')
```

```python
import build
from common import *
def with_amp(opt, M, which):
    txt = build.build(opt)
    lines = txt.split('\n')
    i = max(j for j,l in enumerate(lines) if l.startswith('; @launch'))
    lines.insert(i+1, '; @launch kernel=s5la_c_kernel grid=(1,1,1) block=(256,1,1) lds=1024')
    txt = '\n'.join(lines)
    a = Asm()
    n = 's5la_c_kernel'
    kernel_header(a, n)
    a('s_load_dwordx2 s[36:37], s[0:1], 112')
    a('s_cmp_ge_u32 s2, 1'); a('s_cbranch_scc1 L_c_end')
    a('s_waitcnt lgkmcnt(0)')
    srd(a, 48, 36, WS_SIZE)
    a('v_mov_b32 v10, 0'); a('v_mov_b32 v11, -1'); a('v_mov_b32 v12, 0')
    a('ds_write_b32 v10, v11'); a('ds_write_b32 v10, v12 offset:4')
    a('s_waitcnt lgkmcnt(0)'); a('s_barrier')
    a('v_lshlrev_b32 v1, 8, v0')
    a('v_lshrrev_b32 v2, 3, v0'); a('v_cmp_gt_u32 vcc, 28, v2'); a('s_and_saveexec_b64 s[10:11], vcc')
    a('s_cbranch_execz L_c_skip')
    k0, i0, k1, iA, iB = which
    a(f's_mov_b32 s12, {WS_STAMP + k0*65536 + 4*i0}')
    a('buffer_load_dword v3, v1, s[48:51], s12 offen sc1')
    a('v_and_b32 v5, 4, v0'); a('v_cmp_eq_u32 vcc, 0, v5'); a(f'v_mov_b32 v6, {4*iB}'); a(f'v_mov_b32 v7, {4*iA}'); a('v_cndmask_b32 v6, v6, v7, vcc')
    a('v_add_u32 v6, v6, v1')
    a(f's_mov_b32 s12, {WS_STAMP + k1*65536}')
    a('buffer_load_dword v4, v6, s[48:51], s12 offen sc1')
    a('s_waitcnt vmcnt(0)')
    a('ds_min_u32 v10, v3'); a('ds_max_u32 v10, v4 offset:4')
    a('L_c_skip:')
    a('s_mov_b64 exec, s[10:11]')
    a('s_waitcnt lgkmcnt(0)'); a('s_barrier')
    a('ds_read_b64 v[14:15], v10'); a('s_waitcnt lgkmcnt(0)')
    a('v_sub_u32 v14, v15, v14'); a('s_nop 0'); a('v_readfirstlane_b32 s14, v14'); a('s_nop 3')
    a('s_min_u32 s14, s14, 20000')
    a(f's_mul_i32 s14, s14, {M}')
    a('s_memrealtime s[16:17]'); a('s_waitcnt lgkmcnt(0)')
    a('L_c_spin:')
    a('s_memrealtime s[18:19]'); a('s_waitcnt lgkmcnt(0)')
    a('s_sub_u32 s20, s18, s16'); a('s_cmp_lt_u32 s20, s14'); a('s_cbranch_scc1 L_c_spin')
    a('L_c_end:')
    a('s_endpgm')
    kernel_desc(a, n, vgpr=32, sgpr=64, accum=32)
    return txt + a.text()
if __name__ == '__main__':
    o = {'stamps': 1}
    open('calA0.s','w').write(with_amp(o, 0, (0,0,1,4,3)))
    open('calA8.s','w').write(with_amp(o, 8, (0,0,1,4,3)))
    open('calB8.s','w').write(with_amp(o, 8, (0,0,0,6,7)))
    open('calC8.s','w').write(with_amp(o, 8, (0,0,0,3,3)))
    open('calD8.s','w').write(with_amp(o, 8, (0,0,0,2,2)))
    open('calE8.s','w').write(with_amp(o, 8, (0,0,1,0,0)))
```

```python
from v2lib import *

def role_A(a, opt):
    st = Stamps(a, opt.get('stamps'))
    cap = opt.get('spin', 1 << 20)
    XS, WSB = 0, 49152
    XSUB, EXB = 114688, 131072
    VA_X, VA_W, VD_X, VD_W = 2, 6, 10, 14
    LR, LI, NLI = 18, 19, 20
    L16R, L16I, L32R, L32I, L128R, L128I, PPR, PPI = 21, 22, 23, 24, 25, 26, 27, 28
    PP = 29
    F0, ACC, G, T = 32, 64, 128, 192
    acc = lambda tt, comp, r=0: ACC + (tt*2+comp)*16 + r

    st.mark()
    a(f's_and_b32 s{S_SH}, s{S_W}, 1'); a(f's_lshr_b32 s{S_TH}, s{S_W}, 1')
    a(f'v_and_b32 v{PP}, 31, v1')
    a(f'v_and_b32 v{T+4}, 7, v1'); a(f'v_lshrrev_b32 v{T+5}, 4, v1')
    a(f'v_xor_b32 v{T+6}, v{T+4}, v{T+5}'); a(f'v_lshlrev_b32 v{T+6}, 4, v{T+6}'); a(f'v_xor_b32 v{T+7}, 64, v{T+6}')
    a(f'v_and_b32 v{T+8}, 32, v1'); a(f'v_bfe_u32 v{T+9}, v1, 3, 2'); a(f'v_add_u32 v{T+8}, v{T+8}, v{T+9}')
    a(f's_lshl_b32 s{S_T0}, s{S_TH}, 6'); a(f's_lshl_b32 s{S_T1}, s{S_SH}, 4'); a(f's_add_u32 s{S_T0}, s{S_T0}, s{S_T1}')
    a(f'v_add_u32 v{T+8}, s{S_T0}, v{T+8}')
    a(f'v_mul_u32_u24 v{T+8}, 896, v{T+8}')
    for u in range(4):
        a(f'v_add_u32 v{VD_X+u}, v{T+8}, v{T+6+(u&1)}')
        if u: a(f'v_add_u32 v{VD_X+u}, {u*(4*896-1024)}, v{VD_X+u}')
    a(f'v_lshrrev_b32 v{T+8}, 3, v1'); a(f's_lshl_b32 s{S_T0}, s{S_TH}, 5'); a(f'v_add_u32 v{T+8}, s{S_T0}, v{T+8}')
    a(f'v_mul_u32_u24 v{T+8}, 896, v{T+8}')
    for u in range(4):
        a(f'v_add_u32 v{VD_W+u}, v{T+8}, v{T+6+(u&1)}')
        if u: a(f'v_add_u32 v{VD_W+u}, {u*(8*896-1024)}, v{VD_W+u}')
    a(f's_mul_i32 s{S_XB}, s{S_C}, {128*896}')
    a(f's_mul_i32 s{S_WB}, s{S_S}, {64*896}')
    a(f's_lshl_b32 s{S_LDSW}, s{S_W}, 12')
    a(f's_add_u32 s{S_KOFF}, s{S_C}, s{S_S}'); mod7(a, S_KOFF); a(f's_lshl_b32 s{S_KOFF}, s{S_KOFF}, 7')
    a(f's_lshl_b32 s{S_T0}, s{S_S}, 6'); a(f's_lshl_b32 s{S_T1}, s{S_SH}, 5'); a(f's_add_u32 s{S_T0}, s{S_T0}, s{S_T1}')
    a(f'v_add_u32 v{T}, s{S_T0}, v{PP}'); a(f'v_lshlrev_b32 v{T}, 1, v{T}')
    a('v_mov_b32 v30, 0')
    a('s_waitcnt lgkmcnt(0)')
    srd(a, SRD_WS, P_WS, WS_SIZE)
    a(f'buffer_load_dword v31, v30, {ws()}, 0 offen offset:{WS_EPA} sc1')
    a(f'global_load_ushort v{T+1}, v{T}, s[{P_LRE}:{P_LRE+1}]')
    a(f'global_load_ushort v{T+2}, v{T}, s[{P_LIM}:{P_LIM+1}]')
    a(f'global_load_ushort v{T+3}, v{T}, s[{P_LDT}:{P_LDT+1}]')
    srd(a, SRD_X, P_X, 2048*896)
    a(f's_cmp_eq_u32 s{S_SH}, 0')
    a(f's_cselect_b32 s{SRD_W}, s{P_BRE}, s{P_BIM}'); a(f's_cselect_b32 s{SRD_W+1}, s{P_BRE+1}, s{P_BIM+1}')
    a(f's_and_b32 s{SRD_W+1}, s{SRD_W+1}, 0xffff'); a(f's_mov_b32 s{SRD_W+2}, {448*896}'); a(f's_mov_b32 s{SRD_W+3}, 0x00020000')

    def dma_atoms(i):
        slot = i % 3
        at = []
        for part, (vd, srd_, base, lds) in enumerate(((VD_X, SRD_X, S_XB, XS), (VD_W, SRD_W, S_WB, WSB))):
            for u in range(4):
                x = []
                if u == 0:
                    x += [f's_add_u32 m0, s{S_LDSW}, {lds + slot*16384}', f's_add_u32 s{S_T4}, s{base}, s{S_KOFF}']
                x.append(f'buffer_load_dwordx4 v{vd+u}, s[{srd_}:{srd_+3}], s{S_T4} offen offset:{1024*u} lds')
                if part == 1 and u == 3:
                    x += [f's_add_u32 s{S_KOFF}, s{S_KOFF}, 128', f's_cmp_ge_u32 s{S_KOFF}, 896',
                          f's_cselect_b32 s{S_T1}, 896, 0', f's_sub_u32 s{S_KOFF}, s{S_KOFF}, s{S_T1}']
                at.append(x)
        return at
    for i in range(2):
        for x in dma_atoms(i):
            for ins in x: a(ins)
    srd(a, SRD_OUT, P_OUT, 2048*896*4)

    a(f'v_lshrrev_b32 v{T+8}, 5, v1'); a(f'v_bfe_u32 v{T+9}, v1, 1, 3'); a(f'v_lshlrev_b32 v{T+10}, 7, v{PP}')
    a(f's_lshl_b32 s{S_T0}, s{S_TH}, 13'); a(f's_lshl_b32 s{S_T1}, s{S_SH}, 13'); a(f's_add_u32 s{S_T1}, s{S_T1}, {WSB}')
    for j in range(4):
        a(f'v_add_u32 v{T+11}, {2*j}, v{T+8}'); a(f'v_xor_b32 v{T+11}, v{T+11}, v{T+9}')
        a(f'v_lshl_add_u32 v{T+11}, v{T+11}, 4, v{T+10}')
        a(f'v_add_u32 v{VA_X+j}, s{S_T0}, v{T+11}'); a(f'v_add_u32 v{VA_W+j}, s{S_T1}, v{T+11}')
    a('s_waitcnt vmcnt(16)')
    lcg(a, S_TAG, 31)
    lam_bar(a, T+1, T+2, T+3, LR, LI, T+4, T+5, T+6)
    a(f'v_sub_f32 v{NLI}, 0, v{LI}')
    csq(a, T+4, T+5, LR, LI); csq(a, T+6, T+7, T+4, T+5); csq(a, T+4, T+5, T+6, T+7)
    csq(a, L16R, L16I, T+4, T+5); csq(a, L32R, L32I, L16R, L16I)
    csq(a, T+4, T+5, L32R, L32I); csq(a, L128R, L128I, T+4, T+5)
    cmul(a, T+6, T+7, T+4, T+5, L32R, L32I)
    a('v_cmp_lt_u32 vcc, 31, v1')
    lab = a.newlabel('pp'); lab2 = a.newlabel('ppd')
    a(f's_cmp_eq_u32 s{S_TH}, 0'); a(f's_cbranch_scc0 {lab}')
    a(f'v_cndmask_b32 v{PPR}, 1.0, v{L32R}, vcc'); a(f'v_cndmask_b32 v{PPI}, 0, v{L32I}, vcc')
    a(f's_branch {lab2}')
    a.label(lab)
    a(f'v_cndmask_b32 v{PPR}, v{T+4}, v{T+6}, vcc'); a(f'v_cndmask_b32 v{PPI}, v{T+5}, v{T+7}, vcc')
    a.label(lab2)

    def reads(i, j, fs):
        slot = i % 3; b = F0 + 16*fs
        a(f'ds_read_b128 v[{b}:{b+3}], v{VA_X+j} offset:{slot*16384}')
        a(f'ds_read_b128 v[{b+8}:{b+11}], v{VA_W+j} offset:{slot*16384}')
        a(f'ds_read_b128 v[{b+12}:{b+15}], v{VA_W+j} offset:{slot*16384+4096}')
        a(f'ds_read_b128 v[{b+4}:{b+7}], v{VA_X+j} offset:{slot*16384+4096}')
    def mfmas(i, ks, fs):
        b = F0 + 16*fs; m = []
        for tt in range(2):
            for comp in range(2):
                c_in = '0' if (i == 0 and ks == 0) else vr(acc(tt, comp), 16)
                m.append(f'v_mfma_f32_32x32x16_bf16 {vr(acc(tt,comp),16)}, {vr(b+4*tt,4)}, {vr(b+8+4*comp,4)}, {c_in}')
        return m
    gemm_loop(a, 7, 4, 4, reads, mfmas, dma_atoms, 8, first_mark=st.mark)
    st.mark()
    flag_addr(a, T+46, 1, 16)
    a(f's_movk_i32 s{S_T5}, {WS_PFA}')
    a(f'buffer_load_dword v{T+47}, v{T+46}, {ws()}, s{S_T5} offen sc1')
    a(f'global_load_ushort v{T+48}, v{T}, s[{P_DSK}:{P_DSK+1}]')
    a('s_nop 7'); a('s_nop 3')

    E = [[T+50, T+51, T+52, T+53], [T+54, T+55, T+56, T+57]]
    cur = [(acc(0,0,0), acc(0,1,0)), (acc(1,0,0), acc(1,1,0))]
    for r in range(1, 16):
        nxt = [(E[tt][(r & 1)*2], E[tt][(r & 1)*2+1]) for tt in range(2)]
        for tt in range(2): a(f'v_fma_f32 v{nxt[tt][0]}, v{LR}, v{cur[tt][0]}, v{acc(tt,0,r)}')
        for tt in range(2): a(f'v_fma_f32 v{nxt[tt][1]}, v{LR}, v{cur[tt][1]}, v{acc(tt,1,r)}')
        for tt in range(2): a(f'v_fmac_f32 v{nxt[tt][0]}, v{NLI}, v{cur[tt][1]}')
        for tt in range(2): a(f'v_fmac_f32 v{nxt[tt][1]}, v{LI}, v{cur[tt][0]}')
        cur = nxt
    E0R, E0I = cur[0]; E1R, E1I = cur[1]
    ELR, ELI = T+8, T+9
    cfma(a, ELR, ELI, L16R, L16I, E0R, E0I, E1R, E1I)
    a(f'v_lshrrev_b32 v{T+10}, 5, v1')
    a(f's_lshl_b32 s{S_T0}, s{S_SH}, 2'); a(f's_lshl_b32 s{S_T1}, s{S_TH}, 1'); a(f's_add_u32 s{S_T0}, s{S_T0}, s{S_T1}')
    a(f'v_add_u32 v{T+10}, s{S_T0}, v{T+10}'); a(f'v_lshlrev_b32 v{T+10}, 8, v{T+10}')
    a(f'v_lshl_add_u32 v{T+10}, v{PP}, 3, v{T+10}'); a(f'v_add_u32 v{T+10}, {EXB}, v{T+10}')
    a(f'ds_write_b64 v{T+10}, v[{ELR}:{ELI}]')
    a(f's_lshl_b32 s{S_T0}, s{S_SH}, 10'); a(f's_add_u32 s{S_T0}, s{S_T0}, {EXB}')
    a(f'v_lshlrev_b32 v{T+11}, 3, v{PP}'); a(f'v_add_u32 v{T+11}, s{S_T0}, v{T+11}')
    VG = T+26; GV = T+28
    a(f's_lshl_b32 s{S_T0}, s{S_SH}, 9'); a(f'v_lshlrev_b32 v{VG}, 4, v{PP}'); a(f'v_add_u32 v{VG}, s{S_T0}, v{VG}')
    a(f'v_mov_b32 v{GV+1}, s{S_TAG}'); a(f'v_mov_b32 v{GV+3}, s{S_TAG}')
    a(f's_lshl_b32 s{S_T2}, s{S_S}, 14'); a(f's_add_u32 s{S_T2}, s{S_T2}, {WS_EG}')
    a(f's_lshl_b32 s{S_T3}, s{S_C}, 10'); a(f's_add_u32 s{S_T3}, s{S_T3}, s{S_T2}')
    a('s_waitcnt lgkmcnt(0)')
    a('s_barrier')
    Q = T+12
    for q in range(4): a(f'ds_read_b64 v[{Q+2*q}:{Q+2*q+1}], v{T+11} offset:{256*q}')
    a('s_waitcnt vmcnt(0) lgkmcnt(0)')
    C2, C3 = T+20, T+22
    cfma(a, C2, C2+1, L32R, L32I, Q, Q+1, Q+2, Q+3)
    cfma(a, C3, C3+1, L32R, L32I, C2, C2+1, Q+4, Q+5)
    cfma(a, GV, GV+2, L32R, L32I, C3, C3+1, Q+6, Q+7)
    lab = a.newlabel('nopub')
    a(f's_cmp_eq_u32 s{S_TH}, 0'); a(f's_cbranch_scc0 {lab}')
    a('s_mov_b32 exec_hi, 0')
    a(f'buffer_store_dwordx4 v[{GV}:{GV+3}], v{VG}, {ws()}, s{S_T3} offen sc1')
    a('s_mov_b32 exec_hi, -1')
    a.label(lab)
    st.mark()
    CINR, CINI = T+32, T+33
    a('v_cmp_lt_u32 vcc, 31, v1')
    lab = a.newlabel('cin'); lab2 = a.newlabel('cind')
    a(f's_cmp_eq_u32 s{S_TH}, 0'); a(f's_cbranch_scc0 {lab}')
    a(f'v_cndmask_b32 v{CINR}, 0, v{Q}, vcc'); a(f'v_cndmask_b32 v{CINI}, 0, v{Q+1}, vcc')
    a(f's_branch {lab2}')
    a.label(lab)
    a(f'v_cndmask_b32 v{CINR}, v{C2}, v{C3}, vcc'); a(f'v_cndmask_b32 v{CINI}, v{C2+1}, v{C3+1}, vcc')
    a.label(lab2)

    poll_flags(a, 16, S_T5, T+46, T+47, S_TAG, cap, first_loaded=True)
    a(f's_lshl_b32 s{S_T0}, s{S_S}, 1'); a(f's_add_u32 s{S_T0}, s{S_T0}, s{S_SH}'); a(f's_mul_i32 s{S_WB2}, s{S_T0}, {14*4096}')
    a(f's_add_u32 s{S_WB2}, s{S_WB2}, {WS_W2F}')
    a(f's_lshl_b32 s{S_KC}, s{S_S}, 1'); a(f's_add_u32 s{S_KC}, s{S_KC}, s{S_TH}')
    a(f's_mul_i32 s{S_LW2}, s{S_SH}, {14*4096}'); a(f's_lshl_b32 s{S_T0}, s{S_TH}, 12'); a(f's_add_u32 s{S_LW2}, s{S_LW2}, s{S_T0}')
    a('v_lshlrev_b32 v4, 4, v1')
    for m in range(7):
        a(f's_cmp_ge_u32 s{S_KC}, 14'); a(f's_cselect_b32 s{S_T1}, 14, 0'); a(f's_sub_u32 s{S_KC}, s{S_KC}, s{S_T1}')
        a(f's_add_u32 m0, s{S_LW2}, {m*8192}')
        a(f's_lshl_b32 s{S_T0}, s{S_KC}, 12'); a(f's_add_u32 s{S_T0}, s{S_T0}, s{S_WB2}')
        for u in range(4):
            a(f'buffer_load_dwordx4 v4, {ws()}, s{S_T0} offen offset:{1024*u} lds')
        a(f's_add_u32 s{S_KC}, s{S_KC}, 2')
    a(f'v_and_b32 v{T+4}, 7, v1'); a(f'v_lshrrev_b32 v{T+5}, 4, v1')
    a(f'v_xor_b32 v{T+6}, v{T+4}, v{T+5}'); a(f'v_lshlrev_b32 v{T+6}, 4, v{T+6}'); a(f'v_xor_b32 v{T+7}, 64, v{T+6}')
    a(f'v_lshrrev_b32 v{T+4}, 3, v1'); a(f's_lshl_b32 s{S_T0}, s{S_W}, 5'); a(f'v_add_u32 v{T+4}, s{S_T0}, v{T+4}')
    a(f'v_mul_u32_u24 v{T+4}, 896, v{T+4}')
    for u in range(4):
        a(f'v_add_u32 v{VD_X+u}, v{T+4}, v{T+6+(u&1)}')
        if u: a(f'v_add_u32 v{VD_X+u}, {u*(8*896-1024)}, v{VD_X+u}')
    a(f's_add_u32 m0, s{S_LDSW}, {XSUB}')
    a(f's_lshl_b32 s{S_T0}, s{S_S}, 7'); a(f's_add_u32 s{S_T0}, s{S_T0}, s{S_XB}')
    for u in range(4):
        a(f'buffer_load_dwordx4 v{VD_X+u}, s[{SRD_X}:{SRD_X+3}], s{S_T0} offen offset:{1024*u} lds')
    st.mark()

    L256R, L256I = T+34, T+35
    csq(a, L256R, L256I, L128R, L128I)
    HR = [T+36, T+38]
    TMIN, TMAX = T+40, T+41
    VGH = T+27
    a(f'v_lshrrev_b32 v{VGH}, 5, v1'); a(f'v_lshlrev_b32 v{VGH}, 10, v{VGH}'); a(f'v_sub_u32 v{VGH}, v{VG}, v{VGH}')
    a(f'v_add_u32 v{VGH}, {16*1024}, v{VGH}')
    a(f's_sub_u32 s{S_T3}, s{S_T3}, {17*1024}')
    a(f's_mov_b32 s{S_SPIN}, 0')
    lpoll = a.newlabel('poll'); ldone = a.newlabel('polldone')
    a(f'v_mov_b32 v{HR[0]}, 0'); a(f'v_mov_b32 v{HR[0]+1}, 0'); a(f'v_mov_b32 v{HR[1]}, 0'); a(f'v_mov_b32 v{HR[1]+1}, 0')
    a(f's_cmp_eq_u32 s{S_C}, 0'); a(f's_cbranch_scc1 {ldone}')
    a.label(lpoll)
    for m in range(7, -1, -1):
        sk = a.newlabel('sk')
        a(f's_cmp_gt_u32 s{S_C}, {2*m}'); a(f's_cbranch_scc0 {sk}')
        a(f's_cmp_eq_u32 s{S_C}, {2*m+1}'); a('s_cselect_b32 exec_hi, 0, -1')
        a(f's_sub_u32 s{S_T0}, s{S_T3}, {m*2048}')
        a(f'buffer_load_dwordx4 v[{G+4*m}:{G+4*m+3}], v{VGH}, {ws()}, s{S_T0} offen sc1')
        a('s_mov_b32 exec_hi, -1')
        a.label(sk)
    a(f'v_mov_b32 v{TMIN}, s{S_TAG}'); a(f'v_mov_b32 v{TMAX}, s{S_TAG}')
    a('s_waitcnt vmcnt(0)')
    for m in range(7, -1, -1):
        sk = a.newlabel('tk')
        a(f's_cmp_gt_u32 s{S_C}, {2*m}'); a(f's_cbranch_scc0 {sk}')
        a(f's_cmp_eq_u32 s{S_C}, {2*m+1}'); a('s_cselect_b32 exec_hi, 0, -1')
        g = G + 4*m
        a(f'v_min3_u32 v{TMIN}, v{TMIN}, v{g+1}, v{g+3}'); a(f'v_max3_u32 v{TMAX}, v{TMAX}, v{g+1}, v{g+3}')
        a('s_mov_b32 exec_hi, -1')
        a.label(sk)
    a(f'v_cmp_ne_u32 vcc, v{TMIN}, v{TMAX}')
    a(f's_add_u32 s{S_SPIN}, s{S_SPIN}, 1'); a(f's_cmp_lt_u32 s{S_SPIN}, {cap}')
    a(f's_cbranch_scc0 L_A_horner')
    a(f's_cbranch_vccnz {lpoll}')
    a.label('L_A_horner')
    for m in range(7, -1, -1):
        sk = a.newlabel('hk')
        src = HR[m & 1]; dst = HR[(m+1) & 1]
        a(f's_cmp_gt_u32 s{S_C}, {2*m}'); a(f's_cbranch_scc0 {sk}')
        a(f's_cmp_eq_u32 s{S_C}, {2*m+1}'); a('s_cselect_b32 exec_hi, 0, -1')
        g = G + 4*m
        cfma(a, dst, dst+1, L256R, L256I, src, src+1, g, g+2)
        a('s_mov_b32 exec_hi, -1')
        a.label(sk)
    H = HR[1]
    a(f'v_mov_b32 v{T+42}, v{H}'); a(f'v_mov_b32 v{T+43}, v{H}'); a(f'v_mov_b32 v{T+44}, v{H+1}'); a(f'v_mov_b32 v{T+45}, v{H+1}')
    a('s_nop 1')
    a(f'v_permlane32_swap_b32 v{T+42}, v{T+43}'); a(f'v_permlane32_swap_b32 v{T+44}, v{T+45}')
    a('s_nop 1')
    cfma(a, H, H+1, L128R, L128I, T+43, T+45, T+42, T+44)
    a.label(ldone)
    st.mark()
    CF = HR[1]
    cfma(a, T+42, T+43, PPR, PPI, CF, CF+1, CINR, CINI)
    cfma(a, T+44, T+45, L16R, L16I, T+42, T+43, E0R, E0I)
    prev = [(T+42, T+43), (T+44, T+45)]
    for r in range(16):
        for tt in range(2): a(f'v_fmac_f32 v{acc(tt,0,r)}, v{LR}, v{prev[tt][0]}')
        for tt in range(2): a(f'v_fmac_f32 v{acc(tt,1,r)}, v{LR}, v{prev[tt][1]}')
        for tt in range(2): a(f'v_fmac_f32 v{acc(tt,0,r)}, v{NLI}, v{prev[tt][1]}')
        for tt in range(2): a(f'v_fmac_f32 v{acc(tt,1,r)}, v{LI}, v{prev[tt][0]}')
        prev = [(acc(0,0,r), acc(0,1,r)), (acc(1,0,r), acc(1,1,r))]
    a(f's_mul_i32 s{S_HB}, s{S_C}, {14*16384}'); a(f's_add_u32 s{S_HB}, s{S_HB}, {WS_HF}')
    a(f's_lshl_b32 s{S_T1}, s{S_S}, 1'); a(f's_add_u32 s{S_T0}, s{S_T1}, s{S_SH}'); a(f's_lshl_b32 s{S_T0}, s{S_T0}, 14')
    a(f's_lshl_b32 s{S_T1}, s{S_TH}, 13'); a(f's_add_u32 s{S_T0}, s{S_T0}, s{S_T1}'); a(f's_add_u32 s{S_T0}, s{S_T0}, s{S_HB}')
    a(f'v_lshrrev_b32 v{T+34}, 5, v1'); a(f'v_lshlrev_b32 v{T+34}, 12, v{T+34}')
    P = G; n = 0
    for tt in range(2):
        for u in range(2):
            tb = 2*tt + u
            a(f'v_xor_b32 v{T+36+tb}, {4*tb}, v{PP}'); a(f'v_lshl_add_u32 v{T+36+tb}, v{T+36+tb}, 4, v{T+34}')
            for comp in range(2):
                d = P + 4*n; n += 1
                for q in range(4):
                    r = 8*u + 2*q
                    a(f'v_cvt_pk_bf16_f32 v{d+q}, v{acc(tt,comp,r)}, v{acc(tt,comp,r+1)}')
                a(f'buffer_store_dwordx4 v[{d}:{d+3}], v{T+36+tb}, {ws()}, s{S_T0} offen offset:{tb*1024+comp*512} sc1')
    st.mark()
    ACC2, FR = 32, 64
    a(f's_lshl_b32 s{S_T0}, s{S_SH}, 1')
    a(f'v_lshrrev_b32 v{T+8}, 5, v1'); a(f'v_add_u32 v{T+8}, s{S_T0}, v{T+8}'); a(f'v_add_u32 v{T+8}, s{S_T0}, v{T+8}')
    a(f'v_bfe_u32 v{T+9}, v1, 1, 3'); a(f'v_lshlrev_b32 v{T+10}, 7, v{PP}')
    a(f's_lshl_b32 s{S_T1}, s{S_TH}, 13'); a(f's_add_u32 s{S_T1}, s{S_T1}, {XSUB}')
    for kk in range(2):
        a(f'v_add_u32 v{T+11}, {2*kk}, v{T+8}'); a(f'v_xor_b32 v{T+11}, v{T+11}, v{T+9}')
        a(f'v_lshl_add_u32 v{T+11}, v{T+11}, 4, v{T+10}'); a(f'v_add_u32 v{6+kk}, s{S_T1}, v{T+11}')
    DG = 96
    a(f'v_and_b32 v{T+8}, 1, v1'); a(f'v_lshlrev_b32 v{T+8}, 4, v{T+8}'); a(f'v_lshlrev_b32 v{T+9}, v{T+8}, v{T+48}')
    a(f'v_bfe_u32 v{T+10}, v1, 1, 2'); a(f'v_bfe_u32 v{T+11}, v1, 4, 1'); a(f'v_lshl_add_u32 v{T+10}, v{T+11}, 2, v{T+10}')
    a(f'v_bfe_u32 v{T+11}, v1, 3, 1'); a(f'v_lshrrev_b32 v{T+12}, 5, v1'); a(f'v_xor_b32 v{T+11}, v{T+11}, v{T+12}')
    a(f'v_lshl_add_u32 v{T+10}, v{T+11}, 3, v{T+10}')
    for q in range(8):
        a(f'v_cmp_eq_u32 vcc, {q}, v{T+10}'); a('s_nop 1'); a(f'v_cndmask_b32 v{DG+q}, 0, v{T+9}, vcc')
    a('v_lshrrev_b32 v14, 4, v1'); a('v_bfe_u32 v15, v1, 2, 2'); a('v_and_b32 v16, 3, v1')
    a('v_and_b32 v17, 1, v14'); a('v_lshlrev_b32 v17, 1, v17'); a('v_lshrrev_b32 v18, 1, v16'); a('v_add_u32 v17, v17, v18')
    a('v_lshrrev_b32 v18, 1, v14'); a('v_lshl_add_u32 v18, v18, 3, v15'); a('v_lshlrev_b32 v19, 2, v17')
    a('v_and_b32 v16, 1, v16'); a('v_lshlrev_b32 v16, 3, v16'); a('v_lshl_add_u32 v16, v17, 10, v16')
    a(f's_lshl_b32 s{S_T0}, s{S_TH}, 13'); a(f'v_add_u32 v16, s{S_T0}, v16')
    for rd in range(2):
        a(f'v_add_u32 v21, {4*rd}, v18'); a('v_xor_b32 v21, v21, v19'); a(f'v_lshl_add_u32 v{10+rd}, v21, 4, v16')
        a(f'v_add_u32 v{12+rd}, 0x10000, v{10+rd}')
    a(f'v_lshrrev_b32 v20, 5, v1'); a(f'v_mul_u32_u24 v20, {4*3584}, v20'); a(f'v_lshl_add_u32 v20, v{PP}, 2, v20')
    a(f's_lshl_b32 s{S_T1}, s{S_C}, 7'); a(f's_lshl_b32 s{S_T2}, s{S_TH}, 6'); a(f's_add_u32 s{S_T1}, s{S_T1}, s{S_T2}')
    a(f's_mul_i32 s{S_OB}, s{S_T1}, 3584'); a(f's_lshl_b32 s{S_T0}, s{S_S}, 8'); a(f's_add_u32 s{S_OB}, s{S_OB}, s{S_T0}')
    a(f's_lshl_b32 s{S_T0}, s{S_SH}, 7'); a(f's_add_u32 s{S_OB}, s{S_OB}, s{S_T0}')
    a(f's_mul_i32 s{S_T0}, s{S_SH}, {14*4096}'); a(f'v_add_u32 v5, s{S_T0}, v4')
    flag_addr(a, T+46, 1, 7)
    a(f's_lshl_b32 s{S_T5}, s{S_C}, 6'); a(f's_add_u32 s{S_T5}, s{S_T5}, {WS_HFL}')
    a('s_waitcnt vmcnt(0)')
    a('s_barrier')
    lab = a.newlabel('nofl')
    a(f's_cmp_eq_u32 s{S_W}, 0'); a(f's_cbranch_scc0 {lab}')
    a(f's_lshl_b32 s{S_T0}, s{S_S}, 2'); a(f'v_mov_b32 v{T+13}, s{S_T0}'); a(f'v_mov_b32 v{T+14}, s{S_TAG}')
    a('s_mov_b64 exec, 1')
    a(f'buffer_store_dword v{T+14}, v{T+13}, {ws()}, s{S_T5} offen sc1')
    a('s_mov_b64 exec, -1')
    a.label(lab)
    st.mark()
    for kk in range(2):
        for mt in range(2):
            a(f'ds_read_b128 v[{FR+8*kk+4*mt}:{FR+8*kk+4*mt+3}], v{6+kk} offset:{4096*mt}')
    for f in range(56):
        a(f'ds_read_b128 a[{4*f}:{4*f+3}], v5 offset:{1024*f}')
        if f == 8:
            a('s_waitcnt lgkmcnt(9)')
            for kk in range(2):
                for mt in range(2):
                    cin = '0' if kk == 0 else vr(ACC2+16*mt, 16)
                    a(f'v_mfma_f32_32x32x16_bf16 {vr(ACC2+16*mt,16)}, {vr(FR+8*kk+4*mt,4)}, {vr(DG+4*kk,4)}, {cin}')
    a('s_waitcnt lgkmcnt(0)')
    a('s_barrier')
    poll_flags(a, 7, S_T5, T+46, T+47, S_TAG, cap)
    lab = a.newlabel('noep')
    a(f's_cmp_eq_u32 s{S_C}, 15'); a(f's_cbranch_scc0 {lab}')
    a(f's_cmp_eq_u32 s{S_S}, 0'); a(f's_cbranch_scc0 {lab}')
    a(f's_cmp_eq_u32 s{S_W}, 0'); a(f's_cbranch_scc0 {lab}')
    a(f'v_mov_b32 v{T+13}, 0'); a(f'v_mov_b32 v{T+14}, s{S_TAG}')
    a('s_mov_b64 exec, 1')
    a(f'buffer_store_dword v{T+14}, v{T+13}, {ws()}, 0 offen offset:{WS_EPA} sc1')
    a('s_mov_b64 exec, -1')
    a('s_waitcnt vmcnt(0)')
    a.label(lab)
    st.mark()
    a(f's_lshl_b32 s{S_KC}, s{S_S}, 1')
    a(f's_add_u32 s{S_HB}, s{S_HB}, s{S_LDSW}')
    def dma2(g):
        slot = g % 3; at = []
        for h in range(2):
            for u in range(4):
                x = []
                if u == 0:
                    x += [f's_add_u32 m0, s{S_LDSW}, {slot*32768 + h*16384}',
                          f's_lshl_b32 s{S_T4}, s{S_KC}, 14', f's_add_u32 s{S_T4}, s{S_T4}, s{S_HB}']
                x.append(f'buffer_load_dwordx4 v4, {ws()}, s{S_T4} offen offset:{1024*u} sc1 lds')
                if u == 3:
                    x += [f's_add_u32 s{S_KC}, s{S_KC}, 1', f's_cmp_ge_u32 s{S_KC}, 14',
                          f's_cselect_b32 s{S_T1}, 14, 0', f's_sub_u32 s{S_KC}, s{S_KC}, s{S_T1}']
                at.append(x)
        return at
    for g in range(2):
        for x in dma2(g):
            for ins in x: a(ins)
    def reads2(g, n, fs):
        h, ks = n >> 2, n & 3
        base = (g % 3)*32768 + h*16384 + ks*256
        va = 10
        if base >= 65536: va, base = 12, base - 65536
        b = FR + 8*fs
        for mt in range(2):
            for rd in range(2):
                a(f'ds_read_b64_tr_b16 v[{b+4*mt+2*rd}:{b+4*mt+2*rd+1}], v{va+rd} offset:{base+4096*mt}')
    def mfmas2(g, n, fs):
        f = g*8 + n; b = FR + 8*fs
        return [f'v_mfma_f32_32x32x16_bf16 {vr(ACC2+16*mt,16)}, {vr(b+4*mt,4)}, {ar(4*f,4)}, {vr(ACC2+16*mt,16)}' for mt in range(2)]
    gemm_loop(a, 7, 8, 4, reads2, mfmas2, dma2, 8)
    st.mark()
    a('s_nop 7'); a('s_nop 3')
    out_store(a, ACC2, S_OB, 20, opt.get('oflags', ''))
    st.mark()
    st.flush()
    a('s_endpgm')
```

```python
from v2lib import *

def phi_groups(regs, tmp):
    out = []
    for b in range(0, len(regs), 4):
        rs = regs[b:b+4]; g = []
        for i, r in enumerate(rs): g.append(f'v_mul_f32 v{tmp+i}, s{S_L2E}, v{r}')
        for i, r in enumerate(rs): g.append(f'v_min_f32 v{tmp+i}, 0, v{tmp+i}')
        for i, r in enumerate(rs): g.append(f'v_exp_f32 v{tmp+i}, v{tmp+i}')
        for i, r in enumerate(rs): g.append(f'v_max_f32 v{r}, 0, v{r}')
        for i, r in enumerate(rs): g.append(f'v_add_f32 v{r}, v{r}, v{tmp+i}')
        for i, r in enumerate(rs): g.append(f'v_add_f32 v{r}, s{S_EPS}, v{r}')
        out.append(g)
    return out

def role_B(a, opt):
    st = Stamps(a, opt.get('stamps'))
    cap = opt.get('spin', 1 << 20)
    S_HP, S_HH = S_S, S_SH
    XSL, WSL = 16384, 21504
    XS, WSB = 0, 3*16384
    KX = 155648
    VA_X, VWR, PP, VD_X, VD_W = 2, 6, 7, 10, 14
    F0 = 24
    AK, AV, AQ = 64, 96, 128
    G, T = 160, 224
    st.mark()
    a(f's_and_b32 s{S_HH}, s{S_W}, 1'); a(f's_lshr_b32 s{S_TH}, s{S_W}, 1')
    a(f'v_and_b32 v{PP}, 31, v1')
    a(f'v_and_b32 v{T+4}, 7, v1'); a(f'v_lshrrev_b32 v{T+5}, 4, v1')
    a(f'v_xor_b32 v{T+6}, v{T+4}, v{T+5}'); a(f'v_lshlrev_b32 v{T+6}, 4, v{T+6}'); a(f'v_xor_b32 v{T+7}, 64, v{T+6}')
    a(f'v_lshrrev_b32 v{T+8}, 3, v1'); a(f's_lshl_b32 s{S_T0}, s{S_W}, 5'); a(f'v_add_u32 v{T+8}, s{S_T0}, v{T+8}')
    a(f'v_mul_u32_u24 v{T+8}, 896, v{T+8}')
    for u in range(4):
        a(f'v_add_u32 v{VD_X+u}, v{T+8}, v{T+6+(u&1)}')
        if u: a(f'v_add_u32 v{VD_X+u}, {u*(8*896-1024)}, v{VD_X+u}')
    a(f'v_mul_u32_u24 v{T+8}, 37, v1'); a(f'v_lshrrev_b32 v{T+8}, 8, v{T+8}')
    a(f'v_mul_u32_u24 v{T+9}, 7, v{T+8}'); a(f'v_sub_u32 v{T+9}, v1, v{T+9}')
    a(f'v_and_b32 v{T+10}, 3, v{T+8}'); a(f'v_lshlrev_b32 v{T+10}, 2, v{T+10}'); a(f'v_lshrrev_b32 v{T+8}, 2, v{T+8}')
    a(f'v_add_u32 v{T+8}, v{T+8}, v{T+10}')
    a(f's_lshl_b32 s{S_T0}, s{S_W}, 4'); a(f'v_add_u32 v{T+8}, s{S_T0}, v{T+8}')
    a(f'v_mul_u32_u24 v{T+8}, 2688, v{T+8}')
    a(f'v_lshl_add_u32 v{VD_W}, v{T+9}, 4, v{T+8}')
    a(f'v_add_u32 v{VD_W+1}, {2*2688-896}, v{VD_W}')
    a(f's_mul_i32 s{S_XB}, s{S_C}, {128*896}')
    a(f's_mul_i32 s{S_WB}, s{S_HP}, 112')
    a(f's_lshl_b32 s{S_LDSW}, s{S_W}, 12')
    a(f's_mul_i32 s{S_LW2}, s{S_W}, {16*112}')
    a(f's_add_u32 s{S_KOFF}, s{S_C}, s{S_HP}'); mod7(a, S_KOFF)
    a('v_mov_b32 v30, 0')
    a('s_waitcnt lgkmcnt(0)')
    srd(a, SRD_WS, P_WS, WS_SIZE)
    a(f'buffer_load_dword v31, v30, {ws()}, 0 offen offset:{WS_EPB} sc1')
    srd(a, SRD_X, P_BX, 2048*896); srd(a, SRD_W, P_WQKV, 448*2688)

    def dma_atoms(i):
        slot = i % 3; at = []
        for u in range(4):
            x = []
            if u == 0:
                x += [f's_add_u32 m0, s{S_LDSW}, {XS + slot*XSL}', f's_lshl_b32 s{S_T4}, s{S_KOFF}, 7', f's_add_u32 s{S_T4}, s{S_T4}, s{S_XB}']
            x.append(f'buffer_load_dwordx4 v{VD_X+u}, s[{SRD_X}:{SRD_X+3}], s{S_T4} offen offset:{1024*u} lds')
            at.append(x)
        for part in range(3):
            for h in range(2):
                x = []
                if h == 0:
                    x.append(f's_add_u32 m0, s{S_LW2}, {WSB + slot*WSL + part*7168}')
                    if part == 0: x += [f's_mul_i32 s{S_T4}, s{S_KOFF}, {64*2688}', f's_add_u32 s{S_T4}, s{S_T4}, s{S_WB}']
                    else: x.append(f's_add_u32 s{S_T4}, s{S_T4}, 896')
                x.append('s_mov_b32 exec_hi, 0x00ffffff')
                x.append(f'buffer_load_dwordx4 v{VD_W+h}, s[{SRD_W}:{SRD_W+3}], s{S_T4} offen' + (' offset:896' if h else '') + ' lds')
                x.append('s_mov_b32 exec_hi, -1')
                if part == 2 and h == 1:
                    x += [f's_add_u32 s{S_KOFF}, s{S_KOFF}, 1', f's_cmp_ge_u32 s{S_KOFF}, 7',
                          f's_cselect_b32 s{S_T1}, 7, 0', f's_sub_u32 s{S_KOFF}, s{S_KOFF}, s{S_T1}']
                at.append(x)
        return at
    for i in range(2):
        for x in dma_atoms(i):
            for ins in x: a(ins)
    srd(a, SRD_OUT, P_OUT, 2048*896*4)
    a(f'v_lshrrev_b32 v{T+8}, 5, v1'); a(f'v_bfe_u32 v{T+9}, v1, 1, 3'); a(f'v_lshlrev_b32 v{T+10}, 7, v{PP}')
    a(f's_lshl_b32 s{S_T0}, s{S_TH}, 13')
    for j in range(4):
        a(f'v_add_u32 v{T+11}, {2*j}, v{T+8}'); a(f'v_xor_b32 v{T+11}, v{T+11}, v{T+9}')
        a(f'v_lshl_add_u32 v{T+11}, v{T+11}, 4, v{T+10}'); a(f'v_add_u32 v{VA_X+j}, s{S_T0}, v{T+11}')
    a(f'v_bfe_u32 v{T+8}, v1, 2, 2'); a(f'v_lshlrev_b32 v{T+8}, 2, v{T+8}')
    a(f'v_lshrrev_b32 v{T+9}, 5, v1'); a(f'v_lshl_add_u32 v{T+8}, v{T+9}, 1, v{T+8}')
    a(f'v_mul_u32_u24 v{T+8}, 112, v{T+8}')
    a(f'v_bfe_u32 v{T+9}, v1, 4, 1'); a(f'v_lshl_add_u32 v{T+8}, v{T+9}, 5, v{T+8}')
    a(f'v_and_b32 v{T+9}, 3, v1'); a(f'v_lshl_add_u32 v{T+8}, v{T+9}, 3, v{T+8}')
    a(f's_mul_i32 s{S_T0}, s{S_HH}, 56'); a(f's_add_u32 s{S_T0}, s{S_T0}, {WSB}'); a(f'v_add_u32 v{VWR}, s{S_T0}, v{T+8}')
    a(f's_mov_b32 s{S_L2E}, {hex(LOG2E)}'); a(f's_mov_b32 s{S_EPS}, {hex(EPS6)}')
    a('s_waitcnt vmcnt(20)')
    lcg(a, S_TAG, 31)

    def reads(i, ks, fs):
        slot = i % 3; b = F0 + 20*fs
        a(f'ds_read_b128 v[{b}:{b+3}], v{VA_X+ks} offset:{slot*XSL}')
        for part in (1, 2, 0):
            for rd in range(2):
                d = b + 8 + 4*part + 2*rd
                a(f'ds_read_b64_tr_b16 v[{d}:{d+1}], v{VWR} offset:{slot*WSL + part*7168 + ks*1792 + rd*112}')
        a(f'ds_read_b128 v[{b+4}:{b+7}], v{VA_X+ks} offset:{slot*XSL+4096}')
    def mfmas(i, ks, fs):
        b = F0 + 20*fs; first = (i == 0 and ks == 0); m = []
        for tt in range(2):
            x = vr(b+4*tt, 4)
            for ac, part in ((AK, 1), (AV, 2)):
                d = vr(ac+16*tt, 16)
                m.append(f'v_mfma_f32_32x32x16_bf16 {d}, {x}, {vr(b+8+4*part,4)}, {"0" if first else d}')
            d = vr(AQ+16*tt, 16)
            m.append(f'v_mfma_f32_32x32x16_bf16 {d}, {vr(b+8,4)}, {x}, {"0" if first else d}')
        return m
    gemm_loop(a, 7, 4, 8, reads, mfmas, dma_atoms, 10, first_mark=st.mark)
    st.mark()
    flag_addr(a, T+16, 1, 16)
    a(f's_movk_i32 s{S_T5}, {WS_PFB}')
    a(f'buffer_load_dword v{T+17}, v{T+16}, {ws()}, s{S_T5} offen sc1')
    a('s_nop 7'); a('s_nop 3')

    for g in phi_groups(list(range(AK, AK+32)), T):
        for x in g: a(x)
    PK, PV = 24, 40
    a(f'v_cmp_eq_u32 vcc, 28, v{PP}')
    a(f'v_mov_b32 v{T}, 0x3f803f80')
    KV = AK
    n = 0
    for tt in range(2):
        for q in range(8):
            a(f'v_cvt_pk_bf16_f32 v{PK+8*tt+q}, v{AK+16*tt+2*q}, v{AK+16*tt+2*q+1}')
            a(f'v_cvt_pk_bf16_f32 v{PV+8*tt+q}, v{AV+16*tt+2*q}, v{AV+16*tt+2*q+1}')
            a(f'v_cndmask_b32 v{PV+8*tt+q}, v{PV+8*tt+q}, v{T}, vcc')
    a('s_nop 1')
    for tt in range(2):
        for ks in range(2):
            a(f'v_mfma_f32_32x32x16_bf16 {vr(KV,16)}, {vr(PK+8*tt+4*ks,4)}, {vr(PV+8*tt+4*ks,4)}, {"0" if n == 0 else vr(KV,16)}')
            n += 1
    for rp in range(4):
        a(f'v_mov_b32 v{G+4*rp+1}, s{S_TAG}'); a(f'v_mov_b32 v{G+4*rp+3}, s{S_TAG}')
    a(f'v_lshlrev_b32 v{T+1}, 4, v1')
    a(f's_lshl_b32 s{S_T0}, s{S_HH}, 12'); a(f's_add_u32 s{S_T0}, s{S_T0}, {KX}'); a(f'v_add_u32 v{T+2}, s{S_T0}, v{T+1}')
    a(f's_lshl_b32 s{S_T2}, s{S_HP}, 4'); a(f's_add_u32 s{S_T2}, s{S_T2}, s{S_C}'); a(f's_lshl_b32 s{S_T2}, s{S_T2}, 1'); a(f's_add_u32 s{S_T2}, s{S_T2}, s{S_HH}')
    a(f's_lshl_b32 s{S_T2}, s{S_T2}, 13'); a(f's_add_u32 s{S_T2}, s{S_T2}, {WS_KVP}')
    a('s_waitcnt vmcnt(0)')
    a('s_nop 3')
    lab1 = a.newlabel('kvx1'); labd = a.newlabel('kvxd')
    a(f's_cmp_eq_u32 s{S_TH}, 0'); a(f's_cbranch_scc0 {lab1}')
    for th in range(2):
        keep = KV + 8*th; give = KV + 8*(1-th)
        a(f'ds_write_b128 v{T+2}, v[{give}:{give+3}] offset:{th*2048}')
        a(f'ds_write_b128 v{T+2}, v[{give+4}:{give+7}] offset:{th*2048+1024}')
        a('s_waitcnt lgkmcnt(0)')
        a('s_barrier')
        a(f'ds_read_b128 v[{T+4}:{T+7}], v{T+2} offset:{(1-th)*2048}')
        a(f'ds_read_b128 v[{T+8}:{T+11}], v{T+2} offset:{(1-th)*2048+1024}')
        a('s_waitcnt lgkmcnt(0)')
        for q in range(8):
            a(f'v_add_f32 v{G+4*(q//2)+2*(q&1)}, v{keep+q}, v{T+4+q}')
        if th == 1: a(f's_add_u32 s{S_T2}, s{S_T2}, 4096')
        for rp in range(4):
            a(f'buffer_store_dwordx4 v[{G+4*rp}:{G+4*rp+3}], v{T+1}, {ws()}, s{S_T2} offen offset:{1024*rp} sc1')
        if th == 0:
            a(f's_branch {labd}'); a.label(lab1)
    a.label(labd)
    st.mark()

    lnowo = a.newlabel('nowo'); lq = a.newlabel('qdone')
    PQ = 24
    def pack_q():
        a('v_cmp_gt_u32 vcc, 32, v1')
        for tt in range(2):
            for q in range(8):
                a(f'v_cvt_pk_bf16_f32 v{PQ+8*tt+q}, v{AQ+16*tt+2*q}, v{AQ+16*tt+2*q+1}')
            for q in (6, 7):
                a(f'v_cndmask_b32 v{PQ+8*tt+q}, 0, v{PQ+8*tt+q}, vcc')
    groups = phi_groups(list(range(AQ, AQ+32)), T+4)
    a(f's_cmp_eq_u32 s{S_HP}, 7'); a(f's_cbranch_scc1 {lnowo}')
    poll_flags(a, 16, S_T5, T+16, T+17, S_TAG, cap, first_loaded=True)
    a(f's_lshl_b32 s{S_T0}, s{S_HP}, 1'); a(f's_add_u32 s{S_T0}, s{S_T0}, s{S_HH}'); a(f's_lshl_b32 s{S_WB2}, s{S_T0}, 15')
    a(f's_add_u32 s{S_WB2}, s{S_WB2}, {WS_WOF}')
    a(f's_lshl_b32 s{S_KC}, s{S_TH}, 1'); a(f's_add_u32 s{S_KC}, s{S_KC}, s{S_HP}')
    a(f's_lshl_b32 s{S_LW2}, s{S_HH}, 15'); a(f's_lshl_b32 s{S_T0}, s{S_TH}, 14'); a(f's_add_u32 s{S_LW2}, s{S_LW2}, s{S_T0}')
    atoms = []
    for gp in range(2):
        for h in range(2):
            for u in range(4):
                x = []
                if u == 0:
                    x += [f's_add_u32 m0, s{S_LW2}, {gp*8192 + h*4096}',
                          f's_add_u32 s{S_T4}, s{S_KC}, {gp}', f's_and_b32 s{S_T4}, s{S_T4}, 3', f's_lshl_b32 s{S_T4}, s{S_T4}, 13',
                          f's_add_u32 s{S_T4}, s{S_T4}, s{S_WB2}']
                    if h: x.append(f's_add_u32 s{S_T4}, s{S_T4}, 4096')
                x.append(f'buffer_load_dwordx4 v{T+1}, {ws()}, s{S_T4} offen offset:{1024*u} lds')
                atoms.append(x)
    for gi, g in enumerate(groups):
        for x in g: a(x)
        for at in atoms[2*gi:2*gi+2]:
            for x in at: a(x)
    a(f's_branch {lq}')
    a.label(lnowo)
    for g in groups:
        for x in g: a(x)
    a.label(lq)
    pack_q()
    st.mark()

    lnored = a.newlabel('nored')
    a(f's_cmp_eq_u32 s{S_W}, 0'); a(f's_cbranch_scc0 {lnored}')
    a(f's_lshl_b32 s{S_T2}, s{S_HP}, 18'); a(f's_lshl_b32 s{S_T0}, s{S_C}, 10'); a(f's_add_u32 s{S_T2}, s{S_T2}, s{S_T0}')
    a(f's_add_u32 s{S_T2}, s{S_T2}, {WS_KVP}')
    a(f's_mov_b32 s{S_SPIN}, 0')
    lp = a.newlabel('p1'); ld = a.newlabel('p1d')
    TMIN, TMAX = T+12, T+13
    a.label(lp)
    a(f's_mov_b32 s{S_T0}, s{S_T2}')
    for j in range(16):
        a(f'buffer_load_dwordx4 v[{G+4*j}:{G+4*j+3}], v{T+1}, {ws()}, s{S_T0} offen sc1')
        if j < 15: a(f's_add_u32 s{S_T0}, s{S_T0}, 16384')
    a(f'v_mov_b32 v{TMIN}, s{S_TAG}'); a(f'v_mov_b32 v{TMAX}, s{S_TAG}')
    a('s_waitcnt vmcnt(0)')
    for j in range(16):
        a(f'v_min3_u32 v{TMIN}, v{TMIN}, v{G+4*j+1}, v{G+4*j+3}'); a(f'v_max3_u32 v{TMAX}, v{TMAX}, v{G+4*j+1}, v{G+4*j+3}')
    a(f'v_cmp_ne_u32 vcc, v{TMIN}, v{TMAX}')
    a(f's_add_u32 s{S_SPIN}, s{S_SPIN}, 1'); a(f's_cmp_lt_u32 s{S_SPIN}, {cap}')
    a(f's_cbranch_scc0 {ld}')
    a(f's_cbranch_vccnz {lp}')
    a.label(ld)
    for step in (1, 2, 4, 8):
        for j in range(0, 16, 2*step):
            a(f'v_add_f32 v{G+4*j}, v{G+4*j}, v{G+4*(j+step)}'); a(f'v_add_f32 v{G+4*j+2}, v{G+4*j+2}, v{G+4*(j+step)+2}')
    a(f'v_cvt_pk_bf16_f32 v{T+14}, v{G}, v{G+2}'); a(f'v_mov_b32 v{T+15}, s{S_TAG}')
    a(f'v_lshlrev_b32 v{T+18}, 3, v1')
    a(f's_lshl_b32 s{S_T0}, s{S_HP}, 13'); a(f's_lshl_b32 s{S_T1}, s{S_C}, 9'); a(f's_add_u32 s{S_T0}, s{S_T0}, s{S_T1}'); a(f's_add_u32 s{S_T0}, s{S_T0}, {WS_KVF}')
    a(f'buffer_store_dwordx2 v[{T+14}:{T+15}], v{T+18}, {ws()}, s{S_T0} offen sc1')
    lgo = a.newlabel('rgo')
    a(f's_branch {lgo}')
    a.label(lnored)
    a('s_waitcnt vmcnt(0)')
    a.label(lgo)
    a('s_barrier')
    st.mark()
    lnc = a.newlabel('nocopy')
    a(f's_cmp_eq_u32 s{S_HP}, 7'); a(f's_cbranch_scc1 {lnc}')
    a(f's_lshl_b32 s{S_T0}, s{S_HH}, 15'); a(f'v_add_u32 v5, s{S_T0}, v{T+1}')
    for f in range(32):
        a(f'ds_read_b128 a[{4*f}:{4*f+3}], v5 offset:{1024*f}')
    a.label(lnc)

    a(f'v_lshlrev_b32 v{T+18}, 3, v1')
    a(f's_lshl_b32 s{S_T2}, s{S_HP}, 13'); a(f's_lshl_b32 s{S_T0}, s{S_HH}, 12'); a(f's_add_u32 s{S_T2}, s{S_T2}, s{S_T0}'); a(f's_add_u32 s{S_T2}, s{S_T2}, {WS_KVF}')
    a(f's_mov_b32 s{S_SPIN}, 0')
    lp = a.newlabel('p2'); ld = a.newlabel('p2d')
    a.label(lp)
    for rp in range(8):
        a(f'buffer_load_dwordx2 v[{G+2*rp}:{G+2*rp+1}], v{T+18}, {ws()}, s{S_T2} offen offset:{512*rp} sc1')
    a(f'v_mov_b32 v{T+12}, s{S_TAG}'); a(f'v_mov_b32 v{T+13}, s{S_TAG}')
    a('s_waitcnt vmcnt(0)')
    for rp in range(0, 8, 2):
        a(f'v_min3_u32 v{T+12}, v{T+12}, v{G+2*rp+1}, v{G+2*rp+3}'); a(f'v_max3_u32 v{T+13}, v{T+13}, v{G+2*rp+1}, v{G+2*rp+3}')
    a(f'v_cmp_ne_u32 vcc, v{T+12}, v{T+13}')
    a(f's_add_u32 s{S_SPIN}, s{S_SPIN}, 1'); a(f's_cmp_lt_u32 s{S_SPIN}, {cap}')
    a(f's_cbranch_scc0 {ld}')
    a(f's_cbranch_vccnz {lp}')
    a.label(ld)
    KA = 40
    for rp in range(8): a(f'v_mov_b32 v{KA+rp}, v{G+2*rp}')
    st.mark()
    NUM = 64
    a('s_nop 1')
    for tt in range(2):
        for ks in range(2):
            d = vr(NUM+16*tt, 16)
            a(f'v_mfma_f32_32x32x16_bf16 {d}, {vr(KA+4*ks,4)}, {vr(PQ+8*tt+4*ks,4)}, {"0" if ks == 0 else d}')
    a(f's_lshl_b32 s{S_T2}, s{S_C}, 2'); a(f's_lshl_b32 s{S_T0}, s{S_TH}, 1'); a(f's_add_u32 s{S_T2}, s{S_T2}, s{S_T0}'); a(f's_lshl_b32 s{S_T2}, s{S_T2}, 4')
    a(f's_lshl_b32 s{S_T0}, s{S_HP}, 1'); a(f's_add_u32 s{S_T2}, s{S_T2}, s{S_T0}'); a(f's_add_u32 s{S_T2}, s{S_T2}, s{S_HH}')
    a(f's_lshl_b32 s{S_T2}, s{S_T2}, 11'); a(f's_add_u32 s{S_T2}, s{S_T2}, {WS_OF}')
    a('v_cmp_gt_u32 vcc, 32, v1')
    a('s_nop 7')
    for tt in range(2):
        nb = NUM + 16*tt
        a(f'v_mov_b32 v{T+4}, v{nb+12}'); a(f'v_mov_b32 v{T+5}, v{nb+12}'); a('s_nop 1')
        a(f'v_permlane32_swap_b32 v{T+4}, v{T+5}'); a('s_nop 1')
        a(f'v_add_f32 v{T+5}, s{S_EPS}, v{T+5}'); a(f'v_rcp_f32 v{T+5}, v{T+5}'); a('s_nop 0')
        for r in range(16): a(f'v_mul_f32 v{nb+r}, v{nb+r}, v{T+5}')
        OP = G + 16 + 8*tt
        for q in range(8): a(f'v_cvt_pk_bf16_f32 v{OP+q}, v{nb+2*q}, v{nb+2*q+1}')
        for q in (6, 7): a(f'v_cndmask_b32 v{OP+q}, 0, v{OP+q}, vcc')
        for ks in range(2):
            a(f'buffer_store_dwordx4 v[{OP+4*ks}:{OP+4*ks+3}], v{T+1}, {ws()}, s{S_T2} offen offset:{1024*ks} sc1')
        if tt == 0: a(f's_add_u32 s{S_T2}, s{S_T2}, {16*2048}')
    st.mark()
    ACC2, FR = 32, 64
    a(f'v_lshrrev_b32 v20, 5, v1'); a(f'v_mul_u32_u24 v20, {4*3584}, v20'); a(f'v_lshl_add_u32 v20, v{PP}, 2, v20')
    a(f's_lshl_b32 s{S_T1}, s{S_C}, 7'); a(f's_lshl_b32 s{S_T2}, s{S_TH}, 6'); a(f's_add_u32 s{S_T1}, s{S_T1}, s{S_T2}')
    a(f's_mul_i32 s{S_OB}, s{S_T1}, 3584'); a(f's_lshl_b32 s{S_T0}, s{S_HP}, 8'); a(f's_add_u32 s{S_OB}, s{S_OB}, s{S_T0}')
    a(f's_lshl_b32 s{S_T0}, s{S_HH}, 7'); a(f's_add_u32 s{S_OB}, s{S_OB}, s{S_T0}'); a(f's_add_u32 s{S_OB}, s{S_OB}, {448*4}')
    a(f's_lshl_b32 s{S_HB}, s{S_C}, 2'); a(f's_add_u32 s{S_HB}, s{S_HB}, s{S_W}'); a(f's_lshl_b32 s{S_HB}, s{S_HB}, 15'); a(f's_add_u32 s{S_HB}, s{S_HB}, {WS_OF}')
    a(f's_lshl_b32 s{S_LW2}, s{S_W}, 15')
    a(f's_and_b32 s{S_KC}, s{S_HP}, 3')
    a(f's_lshl_b32 s{S_T0}, s{S_TH}, 16'); a(f'v_add_u32 v10, s{S_T0}, v{T+1}')
    flag_addr(a, T+16, 1, 8)
    a(f's_lshl_b32 s{S_T5}, s{S_C}, 6'); a(f's_add_u32 s{S_T5}, s{S_T5}, {WS_OFL}')
    a('s_waitcnt vmcnt(0) lgkmcnt(0)')
    a('s_barrier')
    lab = a.newlabel('nofl')
    a(f's_cmp_eq_u32 s{S_W}, 0'); a(f's_cbranch_scc0 {lab}')
    a(f's_lshl_b32 s{S_T0}, s{S_HP}, 2'); a(f'v_mov_b32 v{T+13}, s{S_T0}'); a(f'v_mov_b32 v{T+14}, s{S_TAG}')
    a('s_mov_b64 exec, 1')
    a(f'buffer_store_dword v{T+14}, v{T+13}, {ws()}, s{S_T5} offen sc1')
    a('s_mov_b64 exec, -1')
    a.label(lab)
    st.mark()
    lend = a.newlabel('bend')
    a(f's_cmp_eq_u32 s{S_HP}, 7'); a(f's_cbranch_scc1 {lend}')
    poll_flags(a, 8, S_T5, T+16, T+17, S_TAG, cap)
    lab = a.newlabel('noep')
    a(f's_cmp_eq_u32 s{S_C}, 15'); a(f's_cbranch_scc0 {lab}')
    a(f's_cmp_eq_u32 s{S_HP}, 0'); a(f's_cbranch_scc0 {lab}')
    a(f's_cmp_eq_u32 s{S_W}, 0'); a(f's_cbranch_scc0 {lab}')
    a(f'v_mov_b32 v{T+13}, 0'); a(f'v_mov_b32 v{T+14}, s{S_TAG}')
    a('s_mov_b64 exec, 1')
    a(f'buffer_store_dword v{T+14}, v{T+13}, {ws()}, 0 offen offset:{WS_EPB} sc1')
    a('s_mov_b64 exec, -1')
    a('s_waitcnt vmcnt(0)')
    a.label(lab)
    st.mark()
    def dma2(g):
        at = []
        for h in range(2):
            for u in range(4):
                x = []
                if u == 0:
                    x += [f's_add_u32 m0, s{S_LW2}, {g*8192 + h*4096}', f's_lshl_b32 s{S_T4}, s{S_KC}, 13', f's_add_u32 s{S_T4}, s{S_T4}, s{S_HB}']
                    if h: x.append(f's_add_u32 s{S_T4}, s{S_T4}, 4096')
                x.append(f'buffer_load_dwordx4 v{T+1}, {ws()}, s{S_T4} offen offset:{1024*u} sc1 lds')
                if h == 1 and u == 3:
                    x += [f's_add_u32 s{S_KC}, s{S_KC}, 1', f's_and_b32 s{S_KC}, s{S_KC}, 3']
                at.append(x)
        return at
    for g in range(2):
        for x in dma2(g):
            for ins in x: a(ins)
    def reads2(g, n, fs):
        i = 8*g + n; b = FR + 8*fs
        for mt in range(2):
            a(f'ds_read_b128 v[{b+4*mt}:{b+4*mt+3}], v10 offset:{mt*32768 + i*1024}')
    def mfmas2(g, n, fs):
        i = 8*g + n; b = FR + 8*fs
        return [f'v_mfma_f32_32x32x16_bf16 {vr(ACC2+16*mt,16)}, {vr(b+4*mt,4)}, {ar(4*i,4)}, {"0" if i == 0 else vr(ACC2+16*mt,16)}' for mt in range(2)]
    gemm_loop(a, 4, 8, 2, reads2, mfmas2, dma2, 8)
    st.mark()
    a('s_nop 7'); a('s_nop 3')
    out_store(a, ACC2, S_OB, 20, opt.get('oflags', ''))
    a.label(lend)
    st.flush()
    a('s_endpgm')
```

```python
from common import *

S_XCD, S_W, S_C, S_S, S_J = 3, 4, 5, 6, 7
SRD_X, SRD_W, SRD_WS, SRD_OUT = 40, 44, 48, 68
S_TAG, S_KOFF, S_XB, S_WB, S_LDSW, S_TH, S_SH = 52, 53, 54, 55, 56, 57, 58
S_T0, S_T1, S_T2, S_T3, S_SPIN = 59, 60, 61, 62, 63
S_L2E, S_EPS, S_LW2, S_T4 = 64, 65, 66, 67
S_KC, S_HB, S_OB, S_WB2, S_TAG2, S_T5 = 72, 73, 74, 75, 76, 77

WS_EPA, WS_EPB, WS_PFA, WS_PFB, WS_HFL, WS_OFL = 0, 128, 256, 384, 512, 2048

class Stamps:
    def __init__(self, a, on):
        self.a, self.on, self.n = a, on, 0
    def mark(self):
        if self.on:
            assert self.n < 11
            self.a(f's_memrealtime s[{80+2*self.n}:{81+2*self.n}]')
            self.n += 1
    def flush(self):
        if not self.on: return
        a = self.a
        a('s_waitcnt lgkmcnt(0)')
        a(f's_lshl_b32 s{S_T0}, s2, 2'); a(f's_add_u32 s{S_T0}, s{S_T0}, s{S_W}'); a(f's_lshl_b32 s{S_T0}, s{S_T0}, 6')
        a(f's_add_u32 s{S_T0}, s{S_T0}, {WS_STAMP}')
        a('v_mov_b32 v2, 0')
        for i in range(self.n):
            a(f'v_mov_b32 v3, s{80+2*i}')
            a(f'buffer_store_dword v3, v2, s[{SRD_WS}:{SRD_WS+3}], s{S_T0} offen offset:{4*i}')

def ws(): return f's[{SRD_WS}:{SRD_WS+3}]'

def lcg(a, dst, vsrc):
    a(f'v_readfirstlane_b32 s{dst}, v{vsrc}')
    a('s_nop 3')
    a(f's_mul_i32 s{dst}, s{dst}, {LCG_A}')
    a(f's_add_u32 s{dst}, s{dst}, {LCG_C}')

def cmul(a, dr, di, ar_, ai, br, bi):
    a(f'v_mul_f32 v{dr}, v{ar_}, v{br}')
    a(f'v_mul_f32 v{di}, v{ar_}, v{bi}')
    a(f'v_fma_f32 v{dr}, -v{ai}, v{bi}, v{dr}')
    a(f'v_fmac_f32 v{di}, v{ai}, v{br}')

def csq(a, dr, di, ar_, ai):
    a(f'v_mul_f32 v{dr}, v{ar_}, v{ar_}')
    a(f'v_mul_f32 v{di}, v{ar_}, v{ai}')
    a(f'v_fma_f32 v{dr}, -v{ai}, v{ai}, v{dr}')
    a(f'v_add_f32 v{di}, v{di}, v{di}')

def cfma(a, dr, di, mr, mi, xr, xi, br, bi):
    a(f'v_fma_f32 v{dr}, v{mr}, v{xr}, v{br}'); a(f'v_fma_f32 v{di}, v{mr}, v{xi}, v{bi}')
    a(f'v_fma_f32 v{dr}, -v{mi}, v{xi}, v{dr}'); a(f'v_fmac_f32 v{di}, v{mi}, v{xr}')

def lam_bar(a, vlre, vlim, vldt, dr, di, t0, t1, t2):
    a(f'v_lshlrev_b32 v{vlre}, 16, v{vlre}')
    a(f'v_lshlrev_b32 v{vlim}, 16, v{vlim}')
    a(f'v_lshlrev_b32 v{vldt}, 16, v{vldt}')
    a(f'v_mul_f32 v{t0}, {hex(LOG2E)}, v{vldt}')
    a(f'v_exp_f32 v{t0}, v{t0}')
    a('s_nop 0')
    a(f'v_cvt_pk_bf16_f32 v{t0}, v{t0}, v{t0}')
    a(f'v_and_b32 v{t0}, 0xffff0000, v{t0}')
    a(f'v_mul_f32 v{t1}, v{t0}, v{vlre}')
    a(f'v_mul_f32 v{t2}, v{t0}, v{vlim}')
    a(f'v_mul_f32 v{t1}, {hex(LOG2E)}, v{t1}')
    a(f'v_mul_f32 v{t2}, {hex(INV2PI)}, v{t2}')
    a(f'v_exp_f32 v{t1}, v{t1}')
    a(f'v_fract_f32 v{t2}, v{t2}')
    a(f'v_cos_f32 v{dr}, v{t2}')
    a(f'v_sin_f32 v{di}, v{t2}')
    a('s_nop 0')
    a(f'v_mul_f32 v{dr}, v{dr}, v{t1}')
    a(f'v_mul_f32 v{di}, v{di}, v{t1}')

def mod7(a, s):
    for sub in (14, 7, 7):
        a(f's_cmp_ge_u32 s{s}, {sub}'); a(f's_cselect_b32 s{S_T0}, {sub}, 0'); a(f's_sub_u32 s{s}, s{s}, s{S_T0}')

def spread(slots, atoms):
    out = [[] for _ in range(slots)]
    n = len(atoms)
    for i, at in enumerate(atoms):
        out[min(slots-1, (i*slots)//n + (slots//n)//2)].append(at)
    return out

def gemm_loop(a, nchunks, nsteps, nreads, reads, mfmas, dma_atoms, ndma, dist=2, first_mark=None, tail_atoms=None):
    def wait_chunk(i):
        later = min(nchunks-1, i+dist-1) - i
        a(f's_waitcnt vmcnt({later*ndma})')
    wait_chunk(0)
    a('s_barrier')
    if first_mark: first_mark()
    reads(0, 0, 0)
    n = 0
    for p in range(nchunks):
        steps = ([(p-1, nsteps-1)] if p > 0 else []) + [(p, ks) for ks in range(nsteps-1)]
        if p == nchunks-1: steps.append((p, nsteps-1))
        ms = [mfmas(i, ks, (i*nsteps+ks) & 1) for (i, ks) in steps]
        total = sum(len(m) for m in ms)
        atoms = dma_atoms(p+dist) if p+dist < nchunks else []
        if p == nchunks-1 and tail_atoms: atoms = tail_atoms
        fill = spread(total, atoms) if atoms else [[] for _ in range(total)]
        k = 0
        for (i, ks), m in zip(steps, ms):
            g = i*nsteps + ks
            if ks < nsteps-1:
                reads(i, ks+1, (g+1) & 1)
                a(f's_waitcnt lgkmcnt({nreads})')
            elif i < nchunks-1:
                pass
            else:
                a('s_waitcnt lgkmcnt(0)')
            for ins in m:
                a(ins)
                for at in fill[k]:
                    for x in at: a(x)
                k += 1
        if p < nchunks-1:
            a('s_waitcnt lgkmcnt(0)')
            later = min(nchunks-1, p+dist) - (p+1)
            a(f's_waitcnt vmcnt({later*ndma})')
            a('s_barrier')
            reads(p+1, 0, ((p+1)*nsteps) & 1)

def poll_flags(a, nflags, off_sgpr, vaddr, vtmp, tag, cap, first_loaded=False):
    lp = a.newlabel('fl'); ld = a.newlabel('fld'); lc = a.newlabel('flc')
    a(f's_mov_b32 s{S_SPIN}, 0')
    if first_loaded: a(f's_branch {lc}')
    a.label(lp)
    a(f'buffer_load_dword v{vtmp}, v{vaddr}, {ws()}, s{off_sgpr} offen sc1')
    a('s_waitcnt vmcnt(0)')
    a.label(lc)
    a(f'v_cmp_ne_u32 vcc, s{tag}, v{vtmp}')
    a(f's_add_u32 s{S_SPIN}, s{S_SPIN}, 1'); a(f's_cmp_lt_u32 s{S_SPIN}, {cap}')
    a(f's_cbranch_scc0 {ld}')
    a(f's_cbranch_vccnz {lp}')
    a.label(ld)

def flag_addr(a, v, lane, nflags):
    a(f'v_min_u32 v{v}, {nflags-1}, v{lane}'); a(f'v_lshlrev_b32 v{v}, 2, v{v}')

def out_store(a, acc, base_sgpr, vaddr, flags=''):
    for mt in range(2):
        for r in range(16):
            row = 32*mt + (r//4)*8 + r % 4
            a(f's_add_u32 s{S_T0}, s{base_sgpr}, {row*3584}')
            a(f'buffer_store_dword v{acc+16*mt+r}, v{vaddr}, s[{SRD_OUT}:{SRD_OUT+3}], s{S_T0} offen {flags}')
```

```python
from v2lib import *

def role_P(a, opt):
    S_GW = 57
    SRD_CR, SRD_CI, SRD_WO = 40, 44, 64
    T = 192
    a(f's_lshl_b32 s{S_GW}, s{S_C}, 2'); a(f's_add_u32 s{S_GW}, s{S_GW}, s{S_W}')
    a(f'v_lshlrev_b32 v{T}, 1, v0')
    a(f'v_add_u32 v{T+1}, 256, v0'); a(f'v_min_u32 v{T+1}, 447, v{T+1}'); a(f'v_lshlrev_b32 v{T+1}, 1, v{T+1}')
    a('v_and_b32 v2, 31, v1'); a('v_lshrrev_b32 v3, 5, v1')
    a('v_mul_u32_u24 v4, 896, v2'); a('v_lshl_add_u32 v4, v3, 4, v4')
    CB, SI = 64, 78
    def item_scalars(n):
        it, nt, rem = S_T0, S_T1, S_T3
        a(f's_add_u32 s{it}, s{S_GW}, {64*n}')
        a(f's_mul_i32 s{nt}, s{it}, 2341'); a(f's_lshr_b32 s{nt}, s{nt}, 16')
        a(f's_mul_i32 s{rem}, s{nt}, 28'); a(f's_sub_u32 s{rem}, s{it}, s{rem}')
        b = SI + 3*n
        a(f's_mul_i32 s{b}, s{nt}, {32*896}'); a(f's_lshl_b32 s{b+1}, s{rem}, 5'); a(f's_add_u32 s{b}, s{b}, s{b+1}')
        a(f's_lshl_b32 s{b+1}, s{rem}, 7')
        a(f's_mul_i32 s{b+2}, s{nt}, 56'); a(f's_lshr_b32 s{it}, s{rem}, 1'); a(f's_lshl_b32 s{it}, s{it}, 2')
        a(f's_add_u32 s{b+2}, s{b+2}, s{it}'); a(f's_and_b32 s{it}, s{rem}, 1'); a(f's_add_u32 s{b+2}, s{b+2}, s{it}')
        a(f's_lshl_b32 s{b+2}, s{b+2}, 10'); a(f's_add_u32 s{b+2}, s{b+2}, {WS_W2F}')
    for n in range(7): item_scalars(n)
    a('v_mov_b32 v30, 0')
    a('s_waitcnt lgkmcnt(0)')
    srd(a, SRD_WS, P_WS, WS_SIZE)
    srd(a, SRD_CR, P_CRE, 448*896); srd(a, SRD_CI, P_CIM, 448*896); srd(a, SRD_WO, P_WO, 448*896)
    for h in range(2):
        a(f'global_load_ushort v{T+2+3*h}, v{T+h}, s[{P_LRE}:{P_LRE+1}]')
        a(f'global_load_ushort v{T+3+3*h}, v{T+h}, s[{P_LIM}:{P_LIM+1}]')
        a(f'global_load_ushort v{T+4+3*h}, v{T+h}, s[{P_LDT}:{P_LDT+1}]')
    a(f'buffer_load_dword v28, v30, {ws()}, 0 offen offset:{WS_EPA} sc1')
    a(f'buffer_load_dword v29, v30, {ws()}, 0 offen offset:{WS_EPB} sc1')
    lskip6 = a.newlabel('p6')
    for n in range(7):
        if n == 6:
            a(f's_cmp_ge_u32 s{S_GW}, 8'); a(f's_cbranch_scc1 {lskip6}')
        a(f'buffer_load_dwordx4 v[{CB+8*n}:{CB+8*n+3}], v4, s[{SRD_CR}:{SRD_CR+3}], s{SI+3*n} offen')
        a(f'buffer_load_dwordx4 v[{CB+8*n+4}:{CB+8*n+7}], v4, s[{SRD_CI}:{SRD_CI+3}], s{SI+3*n} offen')
    a.label(lskip6)
    a('s_waitcnt vmcnt(12)')
    lcg(a, S_TAG, 28); lcg(a, S_TAG2, 29)
    for h in range(2):
        lre, lim, ldt = T+2+3*h, T+3+3*h, T+4+3*h
        lr, li = T+10, T+11
        lam_bar(a, lre, lim, ldt, lr, li, T+12, T+13, T+14)
        a(f'v_add_f32 v{lr}, -1.0, v{lr}')
        a(f'v_mul_f32 v{T+12}, v{lre}, v{lre}'); a(f'v_fmac_f32 v{T+12}, v{lim}, v{lim}')
        a(f'v_rcp_f32 v{T+12}, v{T+12}')
        a(f'v_mul_f32 v{T+16}, v{lr}, v{lre}'); a(f'v_fmac_f32 v{T+16}, v{li}, v{lim}')
        a(f'v_mul_f32 v{T+17}, v{li}, v{lre}'); a(f'v_fma_f32 v{T+17}, -v{lr}, v{lim}, v{T+17}')
        a(f'v_add_f32 v{T+12}, v{T+12}, v{T+12}')
        a(f'v_mul_f32 v{T+16}, v{T+16}, v{T+12}'); a(f'v_mul_f32 v{T+17}, v{T+17}, v{T+12}')
        a(f'v_lshlrev_b32 v{T+15}, 3, v0')
        a(f'ds_write_b64 v{T+15}, v[{T+16}:{T+17}] offset:{2048*h}')
        a('s_nop 0')
    a('s_waitcnt lgkmcnt(0)')
    a('s_barrier')
    a('v_lshlrev_b32 v5, 1, v2'); a(f'v_mul_u32_u24 v6, {4*896}, v3'); a('v_add_u32 v5, v5, v6')
    a(f's_and_b32 s{S_T0}, s{S_GW}, 1')
    a('v_mov_b32 v6, v5')
    lab = a.newlabel('pz')
    a(f's_cmp_eq_u32 s{S_T0}, 0'); a(f's_cbranch_scc1 {lab}')
    a('v_cmp_lt_u32 vcc, 31, v1'); a('v_mov_b32 v7, 0x40000000'); a('s_nop 0'); a('v_cndmask_b32 v6, v5, v7, vcc')
    a.label(lab)
    a('s_waitcnt vmcnt(0)')
    a('v_lshlrev_b32 v8, 6, v3'); a('v_lshlrev_b32 v9, 4, v1')
    FB = 32
    for n in range(7):
        if n == 6:
            lab6 = a.newlabel('q6')
            a(f's_cmp_ge_u32 s{S_GW}, 8'); a(f's_cbranch_scc1 {lab6}')
        b = SI + 3*n
        OB = 128 + 8*n
        a(f'v_add_u32 v10, s{b+1}, v8')
        for q in range(4): a(f'ds_read_b128 v[{FB+4*q}:{FB+4*q+3}], v10 offset:{16*q}')
        a('s_waitcnt lgkmcnt(0)')
        for jd in range(4):
            for h in range(2):
                j = 2*jd + h
                cr, ci = 24 + 2*h, 25 + 2*h
                if h == 0:
                    a(f'v_lshlrev_b32 v{cr}, 16, v{CB+8*n+jd}'); a(f'v_lshlrev_b32 v{ci}, 16, v{CB+8*n+4+jd}')
                else:
                    a(f'v_and_b32 v{cr}, 0xffff0000, v{CB+8*n+jd}'); a(f'v_and_b32 v{ci}, 0xffff0000, v{CB+8*n+4+jd}')
                fr, fi = FB + 2*j, FB + 2*j + 1
                a(f'v_mul_f32 v{12+h}, v{cr}, v{fr}'); a(f'v_fma_f32 v{12+h}, -v{ci}, v{fi}, v{12+h}')
                a(f'v_mul_f32 v{14+h}, -v{cr}, v{fi}'); a(f'v_fma_f32 v{14+h}, -v{ci}, v{fr}, v{14+h}')
            a(f'v_cvt_pk_bf16_f32 v{OB+jd}, v12, v13')
            a(f'v_cvt_pk_bf16_f32 v{OB+4+jd}, v14, v15')
        a(f'buffer_store_dwordx4 v[{OB}:{OB+3}], v9, {ws()}, s{b+2} offen sc1')
        a(f'buffer_store_dwordx4 v[{OB+4}:{OB+7}], v9, {ws()}, s{b+2} offen offset:2048 sc1')
        if n == 6: a.label(lab6)
    WB, SO = 64, 78
    for n in range(7):
        it, nt, ks_ = S_T0, S_T1, S_T3
        a(f's_add_u32 s{it}, s{S_GW}, {64*n}')
        a(f's_lshr_b32 s{nt}, s{it}, 5'); a(f's_and_b32 s{ks_}, s{it}, 31')
        a(f's_lshl_b32 s{SO+n}, s{it}, 10'); a(f's_add_u32 s{SO+n}, s{SO+n}, {WS_WOF}')
        a(f's_lshr_b32 s{it}, s{ks_}, 1'); a(f's_mul_i32 s{it}, s{it}, 28'); a(f's_and_b32 s{ks_}, s{ks_}, 1'); a(f's_lshl_b32 s{ks_}, s{ks_}, 4')
        a(f's_add_u32 s{it}, s{it}, s{ks_}'); a(f's_mul_i32 s{it}, s{it}, 896'); a(f's_lshl_b32 s{nt}, s{nt}, 6'); a(f's_add_u32 s{it}, s{it}, s{nt}')
        if n == 6: a('s_waitcnt vmcnt(40)')
        for j in range(8):
            off = ((j//4)*8 + j % 4)*896
            a(f's_add_u32 s{nt}, s{it}, {off}')
            a(f'buffer_load_ushort v{WB+8*n+j}, v{5 if j < 4 else 6}, s[{SRD_WO}:{SRD_WO+3}], s{nt} offen')
    a('s_waitcnt vmcnt(56)')
    a('s_barrier')
    a(f's_lshl_b32 s{S_T0}, s{S_C}, 2'); a(f'v_mov_b32 v10, s{S_T0}'); a(f'v_mov_b32 v11, s{S_TAG}'); a(f'v_mov_b32 v12, s{S_TAG2}')
    lab = a.newlabel('pfa')
    a(f's_cmp_eq_u32 s{S_W}, 0'); a(f's_cbranch_scc0 {lab}')
    a('s_mov_b64 exec, 1')
    a(f'buffer_store_dword v11, v10, {ws()}, 0 offen offset:{WS_PFA} sc1')
    a('s_mov_b64 exec, -1')
    a.label(lab)
    a('s_waitcnt vmcnt(1)')
    a('s_waitcnt vmcnt(0)')
    for n in range(7):
        for q in range(4):
            a(f'v_lshl_or_b32 v{WB+8*n+q}, v{WB+8*n+2*q+1}, 16, v{WB+8*n+2*q}')
        a(f'buffer_store_dwordx4 v[{WB+8*n}:{WB+8*n+3}], v9, {ws()}, s{SO+n} offen sc1')
    a('s_waitcnt vmcnt(0)')
    a('s_barrier')
    lab = a.newlabel('pfb')
    a(f's_cmp_eq_u32 s{S_W}, 0'); a(f's_cbranch_scc0 {lab}')
    a('s_mov_b64 exec, 1')
    a(f'buffer_store_dword v12, v10, {ws()}, 0 offen offset:{WS_PFB} sc1')
    a.label(lab)
    a('s_endpgm')
```

```python
import sys
from v2lib import *
from v2a import role_A
from v2b import role_B
from v2p import role_P
KN = 'concat_heads__ssm_conv_s5__linear_attn_block__prompt_kernel'
HDR = '''; Kernarg layout (120 bytes, ptrs only, base s[0:1]): d_in[0..11], d_out, d_debug, d_ws
'''
def build(opt):
    a = Asm()
    a(HDR.rstrip())
    a('; @launch grid=(256,1,1) block=(256,1,1) lds=163840')
    a('.amdgcn_target "amdgcn-amd-amdhsa--gfx950"')
    kernel_header(a, KN)
    load_kernargs(a)
    a('s_cmp_ge_u32 s2, 256'); a('s_cbranch_scc1 L_exit')
    a('v_and_b32 v1, 63, v0'); a('v_lshrrev_b32 v2, 6, v0')
    a(f's_and_b32 s{S_XCD}, s2, 7'); a(f's_lshr_b32 s{S_J}, s2, 3')
    a(f'v_readfirstlane_b32 s{S_W}, v2')
    if opt.get('codepf', 1):
        a('s_getpc_b64 s[38:39]')
        a('L_pc:')
        a(f's_lshl_b32 s{S_T0}, s{S_J}, 10'); a(f's_lshl_b32 s{S_T1}, s{S_W}, 8'); a(f's_add_u32 s{S_T0}, s{S_T0}, s{S_T1}')
        a(f'v_lshlrev_b32 v2, 7, v1'); a(f'v_add_u32 v2, s{S_T0}, v2')
        a('s_mov_b64 exec, 3')
        a('global_load_dword v255, v2, s[38:39]')
        a('s_mov_b64 exec, -1')
    a(f's_and_b32 s{S_C}, s{S_XCD}, 3'); a(f's_lshl_b32 s{S_C}, s{S_C}, 2'); a(f's_and_b32 s{S_S}, s{S_J}, 3'); a(f's_add_u32 s{S_C}, s{S_C}, s{S_S}')
    a(f's_lshr_b32 s{S_S}, s{S_J}, 2')
    a(f's_cmp_ge_u32 s{S_XCD}, 4'); a('s_cbranch_scc1 L_roleB')
    a(f's_cmp_eq_u32 s{S_S}, 7'); a('s_cbranch_scc1 L_roleP')
    role_A(a, opt)
    a.label('L_roleB')
    role_B(a, opt)
    a.label('L_roleP')
    role_P(a, opt)
    a.label('L_exit')
    a('s_endpgm')
    a('.fill 64, 4, 0xbf800000')
    kernel_desc(a, KN, vgpr=480, accum=256)
    return a.text()
if __name__ == '__main__':
    opt = {}
    for kv in sys.argv[2:]:
        k, _, v = kv.partition('=')
        opt[k] = (int(v) if v.lstrip('-').isdigit() else v) if v else 1
    open(sys.argv[1], 'w').write(build(opt))
```

```python
from v6lib import *

def role_A(a, opt):
    st = Stamps(a, opt.get('stamps'))
    cap = opt.get('spin', 1 << 20)
    XS, WSB = 0, 49152
    XSUB, EXB = 114688, 131072
    VA_X, VA_W, VD_X, VD_W = 2, 6, 10, 14
    LR, LI, NLI = 18, 19, 20
    L16R, L16I, L32R, L32I, L128R, L128I, PPR, PPI = 21, 22, 23, 24, 25, 26, 27, 28
    PP = 29
    F0, ACC, G, T = 32, 64, 128, 192
    FF = 30
    acc = lambda tt, comp, r=0: ACC + (tt*2+comp)*16 + r

    st.mark()
    a(f's_and_b32 s{S_SH}, s{S_W}, 1'); a(f's_lshr_b32 s{S_TH}, s{S_W}, 1')
    a(f'v_and_b32 v{PP}, 31, v1')
    a(f'v_and_b32 v{T+4}, 7, v1'); a(f'v_lshrrev_b32 v{T+5}, 4, v1')
    a(f'v_xor_b32 v{T+6}, v{T+4}, v{T+5}'); a(f'v_lshlrev_b32 v{T+6}, 4, v{T+6}'); a(f'v_xor_b32 v{T+7}, 64, v{T+6}')
    a(f'v_and_b32 v{T+8}, 32, v1'); a(f'v_bfe_u32 v{T+9}, v1, 3, 2'); a(f'v_add_u32 v{T+8}, v{T+8}, v{T+9}')
    a(f's_lshl_b32 s{S_T0}, s{S_TH}, 6'); a(f's_lshl_b32 s{S_T1}, s{S_SH}, 4'); a(f's_add_u32 s{S_T0}, s{S_T0}, s{S_T1}')
    a(f'v_add_u32 v{T+8}, s{S_T0}, v{T+8}')
    a(f'v_mul_u32_u24 v{T+8}, 896, v{T+8}')
    for u in range(4):
        a(f'v_add_u32 v{VD_X+u}, v{T+8}, v{T+6+(u&1)}')
        if u: a(f'v_add_u32 v{VD_X+u}, {u*(4*896-1024)}, v{VD_X+u}')
    a(f'v_lshrrev_b32 v{T+8}, 3, v1'); a(f's_lshl_b32 s{S_T0}, s{S_TH}, 5'); a(f'v_add_u32 v{T+8}, s{S_T0}, v{T+8}')
    a(f'v_mul_u32_u24 v{T+8}, 896, v{T+8}')
    for u in range(4):
        a(f'v_add_u32 v{VD_W+u}, v{T+8}, v{T+6+(u&1)}')
        if u: a(f'v_add_u32 v{VD_W+u}, {u*(8*896-1024)}, v{VD_W+u}')
    a(f's_mul_i32 s{S_XB}, s{S_C}, {128*896}')
    a(f's_mul_i32 s{S_WB}, s{S_S}, {64*896}')
    a(f's_lshl_b32 s{S_LDSW}, s{S_W}, 12')
    a(f's_add_u32 s{S_KOFF}, s{S_C}, s{S_S}'); mod7(a, S_KOFF); a(f's_lshl_b32 s{S_KOFF}, s{S_KOFF}, 7')
    a(f's_lshl_b32 s{S_T0}, s{S_S}, 6'); a(f's_lshl_b32 s{S_T1}, s{S_SH}, 5'); a(f's_add_u32 s{S_T0}, s{S_T0}, s{S_T1}')
    a(f'v_add_u32 v{T}, s{S_T0}, v{PP}'); a(f'v_lshlrev_b32 v{T}, 1, v{T}')
    a('v_mov_b32 v30, 0')
    a('s_waitcnt lgkmcnt(0)')
    srd(a, SRD_WS, P_WS, WS_SIZE)
    a(f'buffer_load_dword v31, v30, {ws()}, 0 offen offset:{WS_EPA} sc1')
    a(f'global_load_ushort v{T+1}, v{T}, s[{P_LRE}:{P_LRE+1}]')
    a(f'global_load_ushort v{T+2}, v{T}, s[{P_LIM}:{P_LIM+1}]')
    a(f'global_load_ushort v{T+3}, v{T}, s[{P_LDT}:{P_LDT+1}]')
    srd(a, SRD_X, P_X, 2048*896)
    a(f's_cmp_eq_u32 s{S_SH}, 0')
    a(f's_cselect_b32 s{SRD_W}, s{P_BRE}, s{P_BIM}'); a(f's_cselect_b32 s{SRD_W+1}, s{P_BRE+1}, s{P_BIM+1}')
    a(f's_and_b32 s{SRD_W+1}, s{SRD_W+1}, 0xffff'); a(f's_mov_b32 s{SRD_W+2}, {448*896}'); a(f's_mov_b32 s{SRD_W+3}, 0x00020000')

    def dma_atoms(i):
        slot = i % 3
        at = []
        for part, (vd, srd_, base, lds) in enumerate(((VD_X, SRD_X, S_XB, XS), (VD_W, SRD_W, S_WB, WSB))):
            for u in range(4):
                x = []
                if u == 0:
                    x += [f's_add_u32 m0, s{S_LDSW}, {lds + slot*16384}', f's_add_u32 s{S_T4}, s{base}, s{S_KOFF}']
                x.append(f'buffer_load_dwordx4 v{vd+u}, s[{srd_}:{srd_+3}], s{S_T4} offen offset:{1024*u} lds')
                if part == 1 and u == 3:
                    x += [f's_add_u32 s{S_KOFF}, s{S_KOFF}, 128', f's_cmp_ge_u32 s{S_KOFF}, 896',
                          f's_cselect_b32 s{S_T1}, 896, 0', f's_sub_u32 s{S_KOFF}, s{S_KOFF}, s{S_T1}']
                at.append(x)
        return at
    for i in range(2):
        for x in dma_atoms(i):
            for ins in x: a(ins)
    srd(a, SRD_OUT, P_OUT, 2048*896*4)

    a(f'v_lshrrev_b32 v{T+8}, 5, v1'); a(f'v_bfe_u32 v{T+9}, v1, 1, 3'); a(f'v_lshlrev_b32 v{T+10}, 7, v{PP}')
    a(f's_lshl_b32 s{S_T0}, s{S_TH}, 13'); a(f's_lshl_b32 s{S_T1}, s{S_SH}, 13'); a(f's_add_u32 s{S_T1}, s{S_T1}, {WSB}')
    for j in range(4):
        a(f'v_add_u32 v{T+11}, {2*j}, v{T+8}'); a(f'v_xor_b32 v{T+11}, v{T+11}, v{T+9}')
        a(f'v_lshl_add_u32 v{T+11}, v{T+11}, 4, v{T+10}')
        a(f'v_add_u32 v{VA_X+j}, s{S_T0}, v{T+11}'); a(f'v_add_u32 v{VA_W+j}, s{S_T1}, v{T+11}')
    a('s_waitcnt vmcnt(16)')
    lcg(a, S_TAG, 31)
    lam_bar(a, T+1, T+2, T+3, LR, LI, T+4, T+5, T+6)
    a(f'v_sub_f32 v{NLI}, 0, v{LI}')
    a(f'v_add_f32 v{T+4}, -1.0, v{LR}')
    a(f'v_mul_f32 v{T+5}, v{T+1}, v{T+1}'); a(f'v_fmac_f32 v{T+5}, v{T+2}, v{T+2}'); a(f'v_rcp_f32 v{T+5}, v{T+5}')
    a(f'v_mul_f32 v{FF}, v{T+4}, v{T+1}'); a(f'v_fmac_f32 v{FF}, v{LI}, v{T+2}')
    a(f'v_mul_f32 v{FF+1}, v{LI}, v{T+1}'); a(f'v_fma_f32 v{FF+1}, -v{T+4}, v{T+2}, v{FF+1}')
    a(f'v_add_f32 v{T+5}, v{T+5}, v{T+5}')
    a(f'v_mul_f32 v{FF}, v{FF}, v{T+5}'); a(f'v_mul_f32 v{FF+1}, v{FF+1}, v{T+5}')
    csq(a, T+4, T+5, LR, LI); csq(a, T+6, T+7, T+4, T+5); csq(a, T+4, T+5, T+6, T+7)
    csq(a, L16R, L16I, T+4, T+5); csq(a, L32R, L32I, L16R, L16I)
    csq(a, T+4, T+5, L32R, L32I); csq(a, L128R, L128I, T+4, T+5)
    cmul(a, T+6, T+7, T+4, T+5, L32R, L32I)
    a('v_cmp_lt_u32 vcc, 31, v1')
    lab = a.newlabel('pp'); lab2 = a.newlabel('ppd')
    a(f's_cmp_eq_u32 s{S_TH}, 0'); a(f's_cbranch_scc0 {lab}')
    a(f'v_cndmask_b32 v{PPR}, 1.0, v{L32R}, vcc'); a(f'v_cndmask_b32 v{PPI}, 0, v{L32I}, vcc')
    a(f's_branch {lab2}')
    a.label(lab)
    a(f'v_cndmask_b32 v{PPR}, v{T+4}, v{T+6}, vcc'); a(f'v_cndmask_b32 v{PPI}, v{T+5}, v{T+7}, vcc')
    a.label(lab2)

    def reads(i, j, fs):
        slot = i % 3; b = F0 + 16*fs
        return [f'ds_read_b128 v[{b}:{b+3}], v{VA_X+j} offset:{slot*16384}',
                f'ds_read_b128 v[{b+8}:{b+11}], v{VA_W+j} offset:{slot*16384}',
                f'ds_read_b128 v[{b+12}:{b+15}], v{VA_W+j} offset:{slot*16384+4096}',
                f'ds_read_b128 v[{b+4}:{b+7}], v{VA_X+j} offset:{slot*16384+4096}']
    def mfmas(i, ks, fs):
        b = F0 + 16*fs; m = []
        for tt in range(2):
            for comp in range(2):
                c_in = '0' if (i == 0 and ks == 0) else vr(acc(tt, comp), 16)
                m.append(f'v_mfma_f32_32x32x16_bf16 {vr(acc(tt,comp),16)}, {vr(b+4*tt,4)}, {vr(b+8+4*comp,4)}, {c_in}')
        return m
    a(f's_mul_i32 s{S_T0}, s{S_J}, 112'); a(f's_mul_i32 s{S_T1}, s{S_SH}, 56'); a(f's_add_u32 s{S_T0}, s{S_T0}, s{S_T1}')
    a(f'v_add_u32 v253, s{S_T0}, v1'); a('v_lshlrev_b32 v253, 7, v253')
    a(f's_cmp_eq_u32 s{S_TH}, 0')
    a(f's_cselect_b32 s{SRD_P}, s{P_CRE}, s{P_CIM}'); a(f's_cselect_b32 s{SRD_P+1}, s{P_CRE+1}, s{P_CIM+1}')
    a(f's_and_b32 s{SRD_P+1}, s{SRD_P+1}, 0xffff'); a(f's_mov_b32 s{SRD_P+2}, {448*896}'); a(f's_mov_b32 s{SRD_P+3}, 0x00020000')
    pstep = opt.get('apf', 19)
    extra = {pstep: [[f'buffer_load_dword v254, v253, s[{SRD_P}:{SRD_P+3}], 0 offen']]}
    gemm_loop(a, 7, 4, reads, mfmas, dma_atoms, 8, opt.get('a1r', 2), first_mark=st.mark, extra=extra, extra_vm={6: 1})
    st.mark()
    a(f'v_and_b32 v{T+4}, 7, v1'); a(f'v_lshrrev_b32 v{T+5}, 4, v1')
    a(f'v_xor_b32 v{T+6}, v{T+4}, v{T+5}'); a(f'v_lshlrev_b32 v{T+6}, 4, v{T+6}'); a(f'v_xor_b32 v{T+7}, 64, v{T+6}')
    a(f'v_lshrrev_b32 v{T+4}, 3, v1'); a(f's_lshl_b32 s{S_T0}, s{S_SH}, 5'); a(f'v_add_u32 v{T+5}, s{S_T0}, v{T+4}')
    a(f'v_mul_u32_u24 v{T+5}, 896, v{T+5}')
    for u in range(4):
        a(f'v_add_u32 v{VD_W+u}, v{T+5}, v{T+6+(u&1)}')
        if u: a(f'v_add_u32 v{VD_W+u}, {u*(8*896-1024)}, v{VD_W+u}')
    a(f's_lshl_b32 s{S_T0}, s{S_W}, 5'); a(f'v_add_u32 v{T+4}, s{S_T0}, v{T+4}'); a(f'v_mul_u32_u24 v{T+4}, 896, v{T+4}')
    for u in range(4):
        a(f'v_add_u32 v{VD_X+u}, v{T+4}, v{T+6+(u&1)}')
        if u: a(f'v_add_u32 v{VD_X+u}, {u*(8*896-1024)}, v{VD_X+u}')
    a(f's_mul_i32 s{S_WB2}, s{S_S}, {64*896}')
    a('v_lshlrev_b32 v4, 4, v1')
    def c_atoms(ip):
        at = []
        for u in range(4):
            x = []
            if u == 0:
                x += [f's_add_u32 m0, s{S_LDSW}, {ip*16384}', f's_add_u32 s{S_T4}, s{S_S}, {ip}', f's_cmp_ge_u32 s{S_T4}, 7',
                      f's_cselect_b32 s{S_T1}, 7, 0', f's_sub_u32 s{S_T4}, s{S_T4}, s{S_T1}',
                      f's_lshl_b32 s{S_T4}, s{S_T4}, 7', f's_add_u32 s{S_T4}, s{S_T4}, s{S_WB2}']
            x.append(f'buffer_load_dwordx4 v{VD_W+u}, s[{SRD_P}:{SRD_P+3}], s{S_T4} offen offset:{1024*u} lds')
            at.append(x)
        return at
    def xsub_atoms():
        at = []
        for u in range(4):
            x = []
            if u == 0:
                x += [f's_add_u32 m0, s{S_LDSW}, {XSUB}', f's_lshl_b32 s{S_T4}, s{S_S}, 7', f's_add_u32 s{S_T4}, s{S_T4}, s{S_XB}']
            x.append(f'buffer_load_dwordx4 v{VD_X+u}, s[{SRD_X}:{SRD_X+3}], s{S_T4} offen offset:{1024*u} lds')
            at.append(x)
        return at
    def weave(stream, atoms):
        n, k = len(stream), 0
        for j, g in enumerate(stream):
            for x in g: a(x)
            while k < len(atoms) and (k+1)*n <= (j+1)*(len(atoms)+1):
                for x in atoms[k]: a(x)
                k += 1
        while k < len(atoms):
            for x in atoms[k]: a(x)
            k += 1
    a(f'global_load_ushort v{T+48}, v{T}, s[{P_DSK}:{P_DSK+1}]')
    a('s_nop 7'); a('s_nop 3')

    E = [[T+50, T+51, T+52, T+53], [T+54, T+55, T+56, T+57]]
    cur = [(acc(0,0,0), acc(0,1,0)), (acc(1,0,0), acc(1,1,0))]
    stream = []
    for r in range(1, 16):
        nxt = [(E[tt][(r & 1)*2], E[tt][(r & 1)*2+1]) for tt in range(2)]
        g = []
        for tt in range(2): g.append(f'v_fma_f32 v{nxt[tt][0]}, v{LR}, v{cur[tt][0]}, v{acc(tt,0,r)}')
        for tt in range(2): g.append(f'v_fma_f32 v{nxt[tt][1]}, v{LR}, v{cur[tt][1]}, v{acc(tt,1,r)}')
        for tt in range(2): g.append(f'v_fmac_f32 v{nxt[tt][0]}, v{NLI}, v{cur[tt][1]}')
        for tt in range(2): g.append(f'v_fmac_f32 v{nxt[tt][1]}, v{LI}, v{cur[tt][0]}')
        stream.append(g)
        cur = nxt
    weave(stream, c_atoms(1) + c_atoms(2))
    E0R, E0I = cur[0]; E1R, E1I = cur[1]
    ELR, ELI = T+8, T+9
    cfma(a, ELR, ELI, L16R, L16I, E0R, E0I, E1R, E1I)
    a(f'v_lshrrev_b32 v{T+10}, 5, v1')
    a(f's_lshl_b32 s{S_T0}, s{S_SH}, 2'); a(f's_lshl_b32 s{S_T1}, s{S_TH}, 1'); a(f's_add_u32 s{S_T0}, s{S_T0}, s{S_T1}')
    a(f'v_add_u32 v{T+10}, s{S_T0}, v{T+10}'); a(f'v_lshlrev_b32 v{T+10}, 8, v{T+10}')
    a(f'v_lshl_add_u32 v{T+10}, v{PP}, 3, v{T+10}'); a(f'v_add_u32 v{T+10}, {EXB}, v{T+10}')
    a(f'ds_write_b64 v{T+10}, v[{ELR}:{ELI}]')
    a(f's_lshl_b32 s{S_T0}, s{S_SH}, 10'); a(f's_add_u32 s{S_T0}, s{S_T0}, {EXB}')
    a(f'v_lshlrev_b32 v{T+11}, 3, v{PP}'); a(f'v_add_u32 v{T+11}, s{S_T0}, v{T+11}')
    VG = T+26; GV = T+28
    a(f's_lshl_b32 s{S_T0}, s{S_SH}, 9'); a(f'v_lshlrev_b32 v{VG}, 4, v{PP}'); a(f'v_add_u32 v{VG}, s{S_T0}, v{VG}')
    a(f'v_mov_b32 v{GV+1}, s{S_TAG}'); a(f'v_mov_b32 v{GV+3}, s{S_TAG}')
    a(f's_lshl_b32 s{S_T2}, s{S_S}, 14'); a(f's_add_u32 s{S_T2}, s{S_T2}, {WS_EG}')
    a(f's_lshl_b32 s{S_T3}, s{S_C}, 10'); a(f's_add_u32 s{S_T3}, s{S_T3}, s{S_T2}')
    a('s_waitcnt lgkmcnt(0)')
    a('s_barrier')
    Q = T+12
    for q in range(4): a(f'ds_read_b64 v[{Q+2*q}:{Q+2*q+1}], v{T+11} offset:{256*q}')
    a('s_waitcnt lgkmcnt(0)')
    C2, C3 = T+20, T+22
    cfma(a, C2, C2+1, L32R, L32I, Q, Q+1, Q+2, Q+3)
    cfma(a, C3, C3+1, L32R, L32I, C2, C2+1, Q+4, Q+5)
    cfma(a, GV, GV+2, L32R, L32I, C3, C3+1, Q+6, Q+7)
    lab = a.newlabel('nopub')
    a(f's_cmp_eq_u32 s{S_TH}, 0'); a(f's_cbranch_scc0 {lab}')
    a('s_mov_b32 exec_hi, 0')
    a(f'buffer_store_dwordx4 v[{GV}:{GV+3}], v{VG}, {ws()}, s{S_T3} offen sc1')
    a('s_mov_b32 exec_hi, -1')
    a.label(lab)
    st.mark()
    CINR, CINI = T+32, T+33
    a('v_cmp_lt_u32 vcc, 31, v1')
    lab = a.newlabel('cin'); lab2 = a.newlabel('cind')
    a(f's_cmp_eq_u32 s{S_TH}, 0'); a(f's_cbranch_scc0 {lab}')
    a(f'v_cndmask_b32 v{CINR}, 0, v{Q}, vcc'); a(f'v_cndmask_b32 v{CINI}, 0, v{Q+1}, vcc')
    a(f's_branch {lab2}')
    a.label(lab)
    a(f'v_cndmask_b32 v{CINR}, v{C2}, v{C3}, vcc'); a(f'v_cndmask_b32 v{CINI}, v{C2+1}, v{C3+1}, vcc')
    a.label(lab2)

    L256R, L256I = T+34, T+35
    HR = [T+36, T+38]
    TMIN, TMAX = T+40, T+41
    VGH = T+27
    a(f'v_lshrrev_b32 v{VGH}, 5, v1'); a(f'v_lshlrev_b32 v{VGH}, 10, v{VGH}'); a(f'v_sub_u32 v{VGH}, v{VG}, v{VGH}')
    a(f'v_add_u32 v{VGH}, {16*1024}, v{VGH}')
    a(f's_sub_u32 s{S_T3}, s{S_T3}, {17*1024}')
    def granule_loads():
        for m in range(7, -1, -1):
            sk = a.newlabel('sk')
            a(f's_cmp_gt_u32 s{S_C}, {2*m}'); a(f's_cbranch_scc0 {sk}')
            a(f's_cmp_eq_u32 s{S_C}, {2*m+1}'); a('s_cselect_b32 exec_hi, 0, -1')
            a(f's_sub_u32 s{S_T0}, s{S_T3}, {m*2048}')
            a(f'buffer_load_dwordx4 v[{G+4*m}:{G+4*m+3}], v{VGH}, {ws()}, s{S_T0} offen sc1')
            a('s_mov_b32 exec_hi, -1')
            a.label(sk)
    granule_loads()
    scale = []
    TP = G + 40
    for tt in range(2):
        for r in range(0, 16, 2):
            br, bi = acc(tt,0,r), acc(tt,1,r)
            scale.append([f'v_pk_mul_f32 v[{TP}:{TP+1}], v[{bi}:{bi+1}], v[{FF}:{FF+1}] op_sel:[0,1] op_sel_hi:[1,1] neg_lo:[0,1] neg_hi:[0,1]',
                          f'v_pk_mul_f32 v[{bi}:{bi+1}], v[{bi}:{bi+1}], v[{FF}:{FF+1}] op_sel_hi:[1,0]',
                          f'v_pk_fma_f32 v[{bi}:{bi+1}], v[{br}:{br+1}], v[{FF}:{FF+1}], v[{bi}:{bi+1}] op_sel:[0,1,0] op_sel_hi:[1,1,1]',
                          f'v_pk_fma_f32 v[{br}:{br+1}], v[{br}:{br+1}], v[{FF}:{FF+1}], v[{TP}:{TP+1}] op_sel_hi:[1,0,1]'])
    weave(scale, c_atoms(0) + c_atoms(3))
    csq(a, L256R, L256I, L128R, L128I)
    a(f'v_mov_b32 v{HR[0]}, 0'); a(f'v_mov_b32 v{HR[0]+1}, 0'); a(f'v_mov_b32 v{HR[1]}, 0'); a(f'v_mov_b32 v{HR[1]+1}, 0')
    st.mark()
    a(f's_mov_b32 s{S_SPIN}, 0')
    lpoll = a.newlabel('poll'); ldone = a.newlabel('polldone'); lchk = a.newlabel('pollchk')
    a('s_waitcnt vmcnt(8)')
    a(f's_cmp_eq_u32 s{S_C}, 0'); a(f's_cbranch_scc1 {ldone}')
    a(f's_branch {lchk}')
    a.label(lpoll)
    granule_loads()
    a('s_waitcnt vmcnt(0)')
    a.label(lchk)
    a(f'v_mov_b32 v{TMIN}, s{S_TAG}'); a(f'v_mov_b32 v{TMAX}, s{S_TAG}')
    for m in range(7, -1, -1):
        sk = a.newlabel('tk')
        a(f's_cmp_gt_u32 s{S_C}, {2*m}'); a(f's_cbranch_scc0 {sk}')
        a(f's_cmp_eq_u32 s{S_C}, {2*m+1}'); a('s_cselect_b32 exec_hi, 0, -1')
        g = G + 4*m
        a(f'v_min3_u32 v{TMIN}, v{TMIN}, v{g+1}, v{g+3}'); a(f'v_max3_u32 v{TMAX}, v{TMAX}, v{g+1}, v{g+3}')
        a('s_mov_b32 exec_hi, -1')
        a.label(sk)
    a(f'v_cmp_ne_u32 vcc, v{TMIN}, v{TMAX}')
    a(f's_add_u32 s{S_SPIN}, s{S_SPIN}, 1'); a(f's_cmp_lt_u32 s{S_SPIN}, {cap}')
    a(f's_cbranch_scc0 L_A_horner')
    a(f's_cbranch_vccnz {lpoll}')
    a.label('L_A_horner')
    for m in range(7, -1, -1):
        sk = a.newlabel('hk')
        src = HR[m & 1]; dst = HR[(m+1) & 1]
        a(f's_cmp_gt_u32 s{S_C}, {2*m}'); a(f's_cbranch_scc0 {sk}')
        a(f's_cmp_eq_u32 s{S_C}, {2*m+1}'); a('s_cselect_b32 exec_hi, 0, -1')
        g = G + 4*m
        cfma(a, dst, dst+1, L256R, L256I, src, src+1, g, g+2)
        a('s_mov_b32 exec_hi, -1')
        a.label(sk)
    H = HR[1]
    a(f'v_mov_b32 v{T+42}, v{H}'); a(f'v_mov_b32 v{T+43}, v{H}'); a(f'v_mov_b32 v{T+44}, v{H+1}'); a(f'v_mov_b32 v{T+45}, v{H+1}')
    a('s_nop 1')
    a(f'v_permlane32_swap_b32 v{T+42}, v{T+43}'); a(f'v_permlane32_swap_b32 v{T+44}, v{T+45}')
    a('s_nop 1')
    cfma(a, H, H+1, L128R, L128I, T+43, T+45, T+42, T+44)
    a.label(ldone)
    st.mark()
    CF = HR[1]
    cfma(a, T+42, T+43, PPR, PPI, CF, CF+1, CINR, CINI)
    cfma(a, T+44, T+45, L16R, L16I, T+42, T+43, E0R, E0I)
    cmul(a, T+34, T+35, FF, FF+1, T+42, T+43); cmul(a, T+36, T+37, FF, FF+1, T+44, T+45)
    prev = [(T+34, T+35), (T+36, T+37)]
    stream = []
    for r in range(16):
        g = []
        for tt in range(2): g.append(f'v_fmac_f32 v{acc(tt,0,r)}, v{LR}, v{prev[tt][0]}')
        for tt in range(2): g.append(f'v_fmac_f32 v{acc(tt,1,r)}, v{LR}, v{prev[tt][1]}')
        for tt in range(2): g.append(f'v_fmac_f32 v{acc(tt,0,r)}, v{NLI}, v{prev[tt][1]}')
        for tt in range(2): g.append(f'v_fmac_f32 v{acc(tt,1,r)}, v{LI}, v{prev[tt][0]}')
        stream.append(g)
        prev = [(acc(0,0,r), acc(0,1,r)), (acc(1,0,r), acc(1,1,r))]
    weave(stream, c_atoms(4) + c_atoms(5))
    a(f's_mul_i32 s{S_HB}, s{S_C}, {14*16384}'); a(f's_add_u32 s{S_HB}, s{S_HB}, {WS_HF}')
    a(f's_lshl_b32 s{S_T1}, s{S_S}, 1'); a(f's_add_u32 s{S_T0}, s{S_T1}, s{S_SH}'); a(f's_lshl_b32 s{S_T0}, s{S_T0}, 14')
    a(f's_lshl_b32 s{S_T1}, s{S_TH}, 13'); a(f's_add_u32 s{S_T0}, s{S_T0}, s{S_T1}'); a(f's_add_u32 s{S_T0}, s{S_T0}, s{S_HB}')
    a(f'v_lshrrev_b32 v{T+34}, 5, v1'); a(f'v_lshlrev_b32 v{T+34}, 12, v{T+34}')
    P = G; n = 0
    for tt in range(2):
        for u in range(2):
            tb = 2*tt + u
            a(f'v_xor_b32 v{T+36+tb}, {4*tb}, v{PP}'); a(f'v_lshl_add_u32 v{T+36+tb}, v{T+36+tb}, 4, v{T+34}')
            for comp in range(2):
                d = P + 4*n; n += 1
                for q in range(4):
                    r = 8*u + 2*q
                    sg = '-' if comp else ''
                    a(f'v_cvt_pk_bf16_f32 v{d+q}, {sg}v{acc(tt,comp,r)}, {sg}v{acc(tt,comp,r+1)}')
                a(f'buffer_store_dwordx4 v[{d}:{d+3}], v{T+36+tb}, {ws()}, s{S_T0} offen offset:{tb*1024+comp*512} sc1')
    st.mark()
    for x in c_atoms(6) + xsub_atoms():
        for ins in x: a(ins)
    ACC2, FR = 32, 64
    a(f's_lshl_b32 s{S_T0}, s{S_SH}, 1')
    a(f'v_lshrrev_b32 v{T+8}, 5, v1'); a(f'v_add_u32 v{T+8}, s{S_T0}, v{T+8}'); a(f'v_add_u32 v{T+8}, s{S_T0}, v{T+8}')
    a(f'v_bfe_u32 v{T+9}, v1, 1, 3'); a(f'v_lshlrev_b32 v{T+10}, 7, v{PP}')
    a(f's_lshl_b32 s{S_T1}, s{S_TH}, 13'); a(f's_add_u32 s{S_T1}, s{S_T1}, {XSUB}')
    for kk in range(2):
        a(f'v_add_u32 v{T+11}, {2*kk}, v{T+8}'); a(f'v_xor_b32 v{T+11}, v{T+11}, v{T+9}')
        a(f'v_lshl_add_u32 v{T+11}, v{T+11}, 4, v{T+10}'); a(f'v_add_u32 v{6+kk}, s{S_T1}, v{T+11}')
    DG = 96
    a(f'v_and_b32 v{T+8}, 1, v1'); a(f'v_lshlrev_b32 v{T+8}, 4, v{T+8}'); a(f'v_lshlrev_b32 v{T+9}, v{T+8}, v{T+48}')
    a(f'v_bfe_u32 v{T+10}, v1, 1, 2'); a(f'v_bfe_u32 v{T+11}, v1, 4, 1'); a(f'v_lshl_add_u32 v{T+10}, v{T+11}, 2, v{T+10}')
    a(f'v_bfe_u32 v{T+11}, v1, 3, 1'); a(f'v_lshrrev_b32 v{T+12}, 5, v1'); a(f'v_xor_b32 v{T+11}, v{T+11}, v{T+12}')
    a(f'v_lshl_add_u32 v{T+10}, v{T+11}, 3, v{T+10}')
    for q in range(8):
        a(f'v_cmp_eq_u32 vcc, {q}, v{T+10}'); a('s_nop 1'); a(f'v_cndmask_b32 v{DG+q}, 0, v{T+9}, vcc')
    a('v_lshrrev_b32 v14, 4, v1'); a('v_bfe_u32 v15, v1, 2, 2'); a('v_and_b32 v16, 3, v1')
    a('v_and_b32 v17, 1, v14'); a('v_lshlrev_b32 v17, 1, v17'); a('v_lshrrev_b32 v18, 1, v16'); a('v_add_u32 v17, v17, v18')
    a('v_lshrrev_b32 v18, 1, v14'); a('v_lshl_add_u32 v18, v18, 3, v15'); a('v_lshlrev_b32 v19, 2, v17')
    a('v_and_b32 v16, 1, v16'); a('v_lshlrev_b32 v16, 3, v16'); a('v_lshl_add_u32 v16, v17, 10, v16')
    a(f's_lshl_b32 s{S_T0}, s{S_TH}, 13'); a(f'v_add_u32 v16, s{S_T0}, v16')
    for rd in range(2):
        a(f'v_add_u32 v21, {4*rd}, v18'); a('v_xor_b32 v21, v21, v19'); a(f'v_lshl_add_u32 v{10+rd}, v21, 4, v16')
        a(f'v_add_u32 v{12+rd}, 0x10000, v{10+rd}')
    a(f'v_lshrrev_b32 v20, 5, v1'); a(f'v_mul_u32_u24 v20, {4*3584}, v20'); a(f'v_lshl_add_u32 v20, v{PP}, 2, v20')
    a(f's_lshl_b32 s{S_T1}, s{S_C}, 7'); a(f's_lshl_b32 s{S_T2}, s{S_TH}, 6'); a(f's_add_u32 s{S_T1}, s{S_T1}, s{S_T2}')
    a(f's_mul_i32 s{S_OB}, s{S_T1}, 3584'); a(f's_lshl_b32 s{S_T0}, s{S_S}, 8'); a(f's_add_u32 s{S_OB}, s{S_OB}, s{S_T0}')
    a(f's_lshl_b32 s{S_T0}, s{S_SH}, 7'); a(f's_add_u32 s{S_OB}, s{S_OB}, s{S_T0}')
    a(f'v_lshrrev_b32 v{T+8}, 5, v1'); a(f'v_bfe_u32 v{T+9}, v1, 1, 3'); a(f'v_lshlrev_b32 v{T+10}, 7, v{PP}')
    a(f's_lshl_b32 s{S_T0}, s{S_SH}, 12')
    for j in range(4):
        a(f'v_add_u32 v{T+11}, {2*j}, v{T+8}'); a(f'v_xor_b32 v{T+11}, v{T+11}, v{T+9}')
        a(f'v_lshl_add_u32 v{T+11}, v{T+11}, 4, v{T+10}')
        a(f'v_add_u32 v{T+16+j}, s{S_T0}, v{T+11}'); a(f'v_add_u32 v{T+20+j}, 0x10000, v{T+16+j}')
    flag_addr(a, T+46, 1, 7)
    a(f's_lshl_b32 s{S_T5}, s{S_C}, 10'); a(f's_add_u32 s{S_T5}, s{S_T5}, {WS_HFL}')
    a('s_waitcnt vmcnt(0)')
    a('s_barrier')
    lab = a.newlabel('nofl')
    a(f's_cmp_eq_u32 s{S_W}, 0'); a(f's_cbranch_scc0 {lab}')
    a(f's_lshl_b32 s{S_T0}, s{S_S}, 7'); a(f'v_mov_b32 v{T+13}, s{S_T0}'); a(f'v_mov_b32 v{T+14}, s{S_TAG}')
    a('s_mov_b64 exec, 1')
    a(f'buffer_store_dword v{T+14}, v{T+13}, {ws()}, s{S_T5} offen sc1')
    a('s_mov_b64 exec, -1')
    a.label(lab)
    st.mark()
    for kk in range(2):
        for mt in range(2):
            a(f'ds_read_b128 v[{FR+8*kk+4*mt}:{FR+8*kk+4*mt+3}], v{6+kk} offset:{4096*mt}')
    for f in range(56):
        i, ks = divmod(f, 4); ip, h = divmod(i, 2)
        j = 2*h + (ks & 1); comp = ks >> 1
        off = ip*16384 + comp*8192; va = T+16+j
        if off >= 65536: off -= 65536; va = T+20+j
        a(f'ds_read_b128 a[{4*f}:{4*f+3}], v{va} offset:{off}')
        if f == 8:
            a('s_waitcnt lgkmcnt(9)')
            for kk in range(2):
                for mt in range(2):
                    cin = '0' if kk == 0 else vr(ACC2+16*mt, 16)
                    a(f'v_mfma_f32_32x32x16_bf16 {vr(ACC2+16*mt,16)}, {vr(FR+8*kk+4*mt,4)}, {vr(DG+4*kk,4)}, {cin}')
    a('s_waitcnt lgkmcnt(0)')
    a('s_barrier')
    poll_flags(a, 7, S_T5, T+46, T+47, S_TAG, cap)
    lab = a.newlabel('noep')
    a(f's_cmp_eq_u32 s{S_C}, 15'); a(f's_cbranch_scc0 {lab}')
    a(f's_cmp_eq_u32 s{S_S}, 0'); a(f's_cbranch_scc0 {lab}')
    a(f's_cmp_eq_u32 s{S_W}, 0'); a(f's_cbranch_scc0 {lab}')
    a(f'v_mov_b32 v{T+13}, 0'); a(f'v_mov_b32 v{T+14}, s{S_TAG}')
    a('s_mov_b64 exec, 1')
    a(f'buffer_store_dword v{T+14}, v{T+13}, {ws()}, 0 offen offset:{WS_EPA} sc1')
    a('s_mov_b64 exec, -1')
    a('s_waitcnt vmcnt(0)')
    a.label(lab)
    st.mark()
    a(f's_lshl_b32 s{S_KC}, s{S_S}, 1')
    a(f's_add_u32 s{S_HB}, s{S_HB}, s{S_LDSW}')
    def dma2(g):
        slot = g % 3; at = []
        for h in range(2):
            for u in range(4):
                x = []
                if u == 0:
                    x += [f's_add_u32 m0, s{S_LDSW}, {slot*32768 + h*16384}',
                          f's_lshl_b32 s{S_T4}, s{S_KC}, 14', f's_add_u32 s{S_T4}, s{S_T4}, s{S_HB}']
                x.append(f'buffer_load_dwordx4 v4, {ws()}, s{S_T4} offen offset:{1024*u} sc1 lds')
                if u == 3:
                    x += [f's_add_u32 s{S_KC}, s{S_KC}, 1', f's_cmp_ge_u32 s{S_KC}, 14',
                          f's_cselect_b32 s{S_T1}, 14, 0', f's_sub_u32 s{S_KC}, s{S_KC}, s{S_T1}']
                at.append(x)
        return at
    for g in range(2):
        for x in dma2(g):
            for ins in x: a(ins)
    def reads2(g, n, fs):
        h, kp = n >> 1, n & 1; out = []
        b = FR + 16*fs
        for kk in range(2):
            ks = 2*kp + kk
            base = (g % 3)*32768 + h*16384 + ks*256
            va = 10
            if base >= 65536: va, base = 12, base - 65536
            for mt in range(2):
                for rd in range(2):
                    d = b + 8*kk + 4*mt + 2*rd
                    out.append(f'ds_read_b64_tr_b16 v[{d}:{d+1}], v{va+rd} offset:{base+4096*mt}')
        return out
    def mfmas2(g, n, fs):
        b = FR + 16*fs; out = []
        for kk in range(2):
            f = g*8 + 2*n + kk
            for mt in range(2):
                out.append(f'v_mfma_f32_32x32x16_bf16 {vr(ACC2+16*mt,16)}, {vr(b+8*kk+4*mt,4)}, {ar(4*f,4)}, {vr(ACC2+16*mt,16)}')
        return out
    gemm_loop(a, 7, 4, reads2, mfmas2, dma2, 8, opt.get('a2r', 4), depth=opt.get('a2d', 1))
    st.mark()
    a('s_nop 7'); a('s_nop 3')
    out_store(a, ACC2, S_OB, 20, opt.get('oflags', ''))
    st.mark()
    st.flush()
    a('s_endpgm')
```

```python
from v6lib import *

def phi_groups(regs, tmp):
    out = []
    for b in range(0, len(regs), 4):
        rs = regs[b:b+4]; g = []
        for i in (0, 2): g.append(f'v_pk_mul_f32 v[{tmp+i}:{tmp+i+1}], v[{rs[i]}:{rs[i]+1}], s[{S_L2E}:{S_L2E+1}] op_sel_hi:[1,0]')
        for i, r in enumerate(rs): g.append(f'v_exp_f32_e64 v{tmp+i}, v{tmp+i} clamp')
        for i, r in enumerate(rs): g.append(f'v_max_f32 v{r}, 0, v{r}')
        for i in (0, 2): g.append(f'v_pk_add_f32 v[{tmp+i}:{tmp+i+1}], v[{tmp+i}:{tmp+i+1}], s[{S_L2E}:{S_L2E+1}] op_sel:[0,1] op_sel_hi:[1,1]')
        for i in (0, 2): g.append(f'v_pk_add_f32 v[{rs[i]}:{rs[i]+1}], v[{rs[i]}:{rs[i]+1}], v[{tmp+i}:{tmp+i+1}]')
        out.append(g)
    return out

def role_B(a, opt):
    st = Stamps(a, opt.get('stamps'))
    cap = opt.get('spin', 1 << 20)
    S_HP, S_HH = S_S, S_SH
    WSB, WSL = 114688, 14336
    QP = [WSB+14336, WSB+21504, WSB+28672, WSB, WSB+7168, WSB+14336, WSB+21504]
    KX = 155648
    VA_L, VWR, PP, VD_X, VD_W, VA_H = 2, 6, 7, 10, 14, 16
    F0 = 24
    AK, AV, AQ = 64, 96, 128
    G, T = 160, 224
    S_DONE = S_T5
    st.mark()
    a(f's_and_b32 s{S_HH}, s{S_W}, 1'); a(f's_lshr_b32 s{S_TH}, s{S_W}, 1')
    a(f'v_and_b32 v{PP}, 31, v1')
    a(f'v_and_b32 v{T+4}, 7, v1'); a(f'v_lshrrev_b32 v{T+5}, 4, v1')
    a(f'v_xor_b32 v{T+6}, v{T+4}, v{T+5}'); a(f'v_lshlrev_b32 v{T+6}, 4, v{T+6}'); a(f'v_xor_b32 v{T+7}, 64, v{T+6}')
    a(f'v_lshrrev_b32 v{T+8}, 3, v1'); a(f's_lshl_b32 s{S_T0}, s{S_W}, 5'); a(f'v_add_u32 v{T+8}, s{S_T0}, v{T+8}')
    a(f'v_mul_u32_u24 v{T+8}, 896, v{T+8}')
    for u in range(4):
        a(f'v_add_u32 v{VD_X+u}, v{T+8}, v{T+6+(u&1)}')
        if u: a(f'v_add_u32 v{VD_X+u}, {u*(8*896-1024)}, v{VD_X+u}')
    a(f'v_mul_u32_u24 v{T+8}, 37, v1'); a(f'v_lshrrev_b32 v{T+8}, 8, v{T+8}')
    a(f'v_mul_u32_u24 v{T+9}, 7, v{T+8}'); a(f'v_sub_u32 v{T+9}, v1, v{T+9}')
    a(f'v_and_b32 v{T+10}, 3, v{T+8}'); a(f'v_lshlrev_b32 v{T+10}, 2, v{T+10}'); a(f'v_lshrrev_b32 v{T+8}, 2, v{T+8}')
    a(f'v_add_u32 v{T+8}, v{T+8}, v{T+10}')
    a(f's_lshl_b32 s{S_T0}, s{S_W}, 4'); a(f'v_add_u32 v{T+8}, s{S_T0}, v{T+8}')
    a(f'v_mul_u32_u24 v{T+8}, 2688, v{T+8}')
    a(f'v_lshl_add_u32 v{VD_W}, v{T+9}, 4, v{T+8}')
    a(f'v_add_u32 v{VD_W+1}, {2*2688-896}, v{VD_W}')
    a(f's_mul_i32 s{S_XB}, s{S_C}, {128*896}')
    a(f's_mul_i32 s{S_WB}, s{S_HP}, 112')
    a(f's_lshl_b32 s{S_LDSW}, s{S_W}, 12')
    a(f's_mul_i32 s{S_LW2}, s{S_W}, {16*112}')
    a(f's_add_u32 s{S_KOFF}, s{S_C}, s{S_HP}'); mod7(a, S_KOFF)
    a('v_mov_b32 v30, 0')
    a('s_waitcnt lgkmcnt(0)')
    srd(a, SRD_WS, P_WS, WS_SIZE)
    a(f'buffer_load_dword v31, v30, {ws()}, 0 offen offset:{WS_EPB} sc1')
    srd(a, SRD_X, P_BX, 2048*896); srd(a, SRD_W, P_WQKV, 448*2688)

    kinc = [f's_add_u32 s{S_KOFF}, s{S_KOFF}, 1', f's_cmp_ge_u32 s{S_KOFF}, 7',
            f's_cselect_b32 s{S_T1}, 7, 0', f's_sub_u32 s{S_KOFF}, s{S_KOFF}, s{S_T1}']
    def wpair(lds, first, goff):
        at = []
        for h in range(2):
            x = []
            if h == 0: x += [f's_add_u32 m0, s{S_LW2}, {lds}'] + first
            x.append('s_mov_b32 exec_hi, 0x00ffffff')
            x.append(f'buffer_load_dwordx4 v{VD_W+h}, s[{SRD_W}:{SRD_W+3}], s{S_T4} offen' + (' offset:896' if h else '') + ' lds')
            x.append('s_mov_b32 exec_hi, -1')
            at.append(x)
        return at
    def dma_atoms(i):
        slot = i % 3; at = []
        for u in range(4):
            x = []
            if u == 0:
                x += [f's_add_u32 m0, s{S_LDSW}, {i*16384}', f's_lshl_b32 s{S_T4}, s{S_KOFF}, 7', f's_add_u32 s{S_T4}, s{S_T4}, s{S_XB}']
            x.append(f'buffer_load_dwordx4 v{VD_X+u}, s[{SRD_X}:{SRD_X+3}], s{S_T4} offen offset:{1024*u} lds')
            at.append(x)
        at += wpair(WSB + slot*WSL, [f's_mul_i32 s{S_T4}, s{S_KOFF}, {64*2688}', f's_add_u32 s{S_T4}, s{S_T4}, s{S_WB}', f's_add_u32 s{S_T4}, s{S_T4}, 896'], 0)
        at += wpair(WSB + slot*WSL + 7168, [f's_add_u32 s{S_T4}, s{S_T4}, 896'], 0)
        at[-1] += kinc
        return at
    def q_atoms(i):
        at = wpair(QP[i], [f's_mul_i32 s{S_T4}, s{S_KOFF}, {64*2688}', f's_add_u32 s{S_T4}, s{S_T4}, s{S_WB}'], 0)
        at[-1] += kinc
        return at
    for i in range(2):
        for x in dma_atoms(i):
            for ins in x: a(ins)
    srd(a, SRD_OUT, P_OUT, 2048*896*4)
    a(f'v_lshrrev_b32 v{T+8}, 5, v1'); a(f'v_bfe_u32 v{T+9}, v1, 1, 3'); a(f'v_lshlrev_b32 v{T+10}, 7, v{PP}')
    a(f's_lshl_b32 s{S_T0}, s{S_TH}, 13')
    for j in range(4):
        a(f'v_add_u32 v{T+11}, {2*j}, v{T+8}'); a(f'v_xor_b32 v{T+11}, v{T+11}, v{T+9}')
        a(f'v_lshl_add_u32 v{T+11}, v{T+11}, 4, v{T+10}'); a(f'v_add_u32 v{VA_L+j}, s{S_T0}, v{T+11}')
        a(f'v_add_u32 v{VA_H+j}, 0x10000, v{VA_L+j}')
    a(f'v_bfe_u32 v{T+8}, v1, 2, 2'); a(f'v_lshlrev_b32 v{T+8}, 2, v{T+8}')
    a(f'v_lshrrev_b32 v{T+9}, 5, v1'); a(f'v_lshl_add_u32 v{T+8}, v{T+9}, 1, v{T+8}')
    a(f'v_mul_u32_u24 v{T+8}, 112, v{T+8}')
    a(f'v_bfe_u32 v{T+9}, v1, 4, 1'); a(f'v_lshl_add_u32 v{T+8}, v{T+9}, 5, v{T+8}')
    a(f'v_and_b32 v{T+9}, 3, v1'); a(f'v_lshl_add_u32 v{T+8}, v{T+9}, 3, v{T+8}')
    a(f's_mul_i32 s{S_T0}, s{S_HH}, 56'); a(f's_add_u32 s{S_T0}, s{S_T0}, {WSB}'); a(f'v_add_u32 v{VWR}, s{S_T0}, v{T+8}')
    a(f's_mov_b32 s{S_L2E}, {hex(LOG2E)}'); a(f's_mov_b32 s{S_EPS}, {hex(EPS6)}')
    a('s_waitcnt vmcnt(16)')
    lcg(a, S_TAG, 31)

    def xread(d, i, ks, tt):
        off = i*16384 + tt*4096
        return f'ds_read_b128 v[{d}:{d+3}], v{VA_L+ks} offset:{off}' if off < 65536 else f'ds_read_b128 v[{d}:{d+3}], v{VA_H+ks} offset:{off-65536}'
    def reads(i, ks, fs):
        slot = i % 3; b = F0 + 16*fs
        out = [xread(b, i, ks, 0)]
        for part in range(2):
            for rd in range(2):
                d = b + 8 + 4*part + 2*rd
                out.append(f'ds_read_b64_tr_b16 v[{d}:{d+1}], v{VWR} offset:{slot*WSL + part*7168 + ks*1792 + rd*112}')
        out.append(xread(b+4, i, ks, 1))
        return out
    def mfmas(i, ks, fs):
        b = F0 + 16*fs; first = (i == 0 and ks == 0); m = []
        for tt in range(2):
            x = vr(b+4*tt, 4)
            for ac, part in ((AK, 0), (AV, 1)):
                d = vr(ac+16*tt, 16)
                m.append(f'v_mfma_f32_32x32x16_bf16 {d}, {x}, {vr(b+8+4*part,4)}, {"0" if first else d}')
        return m
    qa = [q_atoms(i) for i in range(7)]
    a(f's_mul_i32 s{S_T0}, s{S_J}, {112 if opt.get("map") == 3 else 98}'); a(f's_lshl_b32 s{S_T1}, s{S_W}, 5'); a(f's_add_u32 s{S_T0}, s{S_T0}, s{S_T1}')
    a(f'v_add_u32 v253, s{S_T0}, v1')
    a(f'v_mul_u32_u24 v252, 9363, v253'); a('v_lshrrev_b32 v252, 16, v252')
    a(f'v_mul_u32_u24 v251, 7, v252'); a('v_sub_u32 v251, v253, v251'); a('v_lshlrev_b32 v251, 7, v251')
    a(f'v_mul_u32_u24 v252, 2688, v252'); a('v_add_u32 v252, v252, v251')
    a('v_lshlrev_b32 v253, 7, v253')
    srd(a, SRD_P, P_WO, 448*896)
    pfq = ['s_mov_b32 exec_hi, 0', f'buffer_load_dword v254, v252, s[{SRD_W}:{SRD_W+3}], 0 offen', 's_mov_b32 exec_hi, -1']
    pfo = ['s_mov_b32 exec_hi, 0', f'buffer_load_dword v254, v253, s[{SRD_P}:{SRD_P+3}], 0 offen', 's_mov_b32 exec_hi, -1']
    extra = {opt.get('pfq', 11): [pfq], 19: [pfo, qa[0][0]], 20: [qa[0][1]], 21: [qa[1][0]], 22: [qa[1][1]], 24: [qa[2][0]], 25: [qa[2][1]]}
    gemm_loop(a, 7, 4, reads, mfmas, dma_atoms, 8, opt.get('b1r', 3), first_mark=st.mark, extra=extra, extra_vm={4: 1, 6: 5})
    st.mark()
    a('s_barrier')
    a('s_nop 7')

    PK, PV = 24, 40
    a(f'v_cmp_eq_u32 vcc, 28, v{PP}')
    a(f'v_mov_b32 v{T+4}, 0x3f803f80')
    for tt in range(2):
        for q in range(8):
            a(f'v_cvt_pk_bf16_f32 v{PV+8*tt+q}, v{AV+16*tt+2*q}, v{AV+16*tt+2*q+1}')
        for q in range(8):
            a(f'v_cndmask_b32 v{PV+8*tt+q}, v{PV+8*tt+q}, v{T+4}, vcc')
    KV = AV
    groups = phi_groups(list(range(AK, AK+32)), T)
    q34 = qa[3] + qa[4]
    for tt in range(2):
        for gi, g in enumerate(groups[4*tt:4*tt+4]):
            for x in g: a(x)
            if gi % 2 == 0:
                for x in q34[2*tt + gi//2]: a(x)
        for q in range(8):
            a(f'v_cvt_pk_bf16_f32 v{PK+8*tt+q}, v{AK+16*tt+2*q}, v{AK+16*tt+2*q+1}')
        a('s_nop 1')
        for ks in range(2):
            first = tt == 0 and ks == 0
            a(f'v_mfma_f32_32x32x16_bf16 {vr(KV,16)}, {vr(PK+8*tt+4*ks,4)}, {vr(PV+8*tt+4*ks,4)}, {"0" if first else vr(KV,16)}')
    for rp in range(4):
        a(f'v_mov_b32 v{G+4*rp+1}, s{S_TAG}'); a(f'v_mov_b32 v{G+4*rp+3}, s{S_TAG}')
    a(f'v_lshlrev_b32 v{T+1}, 4, v1')
    a(f's_lshl_b32 s{S_T0}, s{S_HH}, 12'); a(f's_add_u32 s{S_T0}, s{S_T0}, {KX}'); a(f'v_add_u32 v{T+2}, s{S_T0}, v{T+1}')
    a(f's_lshl_b32 s{S_T2}, s{S_HP}, 4'); a(f's_add_u32 s{S_T2}, s{S_T2}, s{S_C}'); a(f's_lshl_b32 s{S_T2}, s{S_T2}, 1'); a(f's_add_u32 s{S_T2}, s{S_T2}, s{S_HH}')
    a(f's_lshl_b32 s{S_T2}, s{S_T2}, 13'); a(f's_add_u32 s{S_T2}, s{S_T2}, {WS_KVP}')
    a('s_waitcnt vmcnt(0)')
    a('s_nop 1')
    lab1 = a.newlabel('kvx1'); labd = a.newlabel('kvxd')
    a(f's_cmp_eq_u32 s{S_TH}, 0'); a(f's_cbranch_scc0 {lab1}')
    for th in range(2):
        keep = KV + 8*th; give = KV + 8*(1-th)
        a(f'ds_write_b128 v{T+2}, v[{give}:{give+3}] offset:{th*2048}')
        a(f'ds_write_b128 v{T+2}, v[{give+4}:{give+7}] offset:{th*2048+1024}')
        a('s_waitcnt lgkmcnt(0)')
        a('s_barrier')
        a(f'ds_read_b128 v[{T+4}:{T+7}], v{T+2} offset:{(1-th)*2048}')
        a(f'ds_read_b128 v[{T+8}:{T+11}], v{T+2} offset:{(1-th)*2048+1024}')
        a('s_waitcnt lgkmcnt(0)')
        for q in range(8):
            a(f'v_add_f32 v{G+4*(q//2)+2*(q&1)}, v{keep+q}, v{T+4+q}')
        if th == 1: a(f's_add_u32 s{S_T2}, s{S_T2}, 4096')
        for rp in range(4):
            a(f'buffer_store_dwordx4 v[{G+4*rp}:{G+4*rp+3}], v{T+1}, {ws()}, s{S_T2} offen offset:{1024*rp} sc1')
        if th == 0:
            a(f's_branch {labd}'); a.label(lab1)
    a.label(labd)
    st.mark()

    QF = [24, 64]
    def qreads(n, fs):
        i, kp = divmod(n, 2); b = QF[fs]; out = []
        for kk in range(2):
            ks = 2*kp + kk
            out.append(xread(b + 12*kk, i, ks, 0))
            for rd in range(2):
                d = b + 12*kk + 8 + 2*rd
                out.append(f'ds_read_b64_tr_b16 v[{d}:{d+1}], v{VWR} offset:{QP[i] - WSB + ks*1792 + rd*112}')
            out.append(xread(b + 12*kk + 4, i, ks, 1))
        return out
    def qmfmas(n, fs):
        b = QF[fs]; m = []
        for kk in range(2):
            for tt in range(2):
                d = vr(AQ+16*tt, 16)
                m.append(f'v_mfma_f32_32x32x16_bf16 {d}, {vr(b+12*kk+8,4)}, {vr(b+12*kk+4*tt,4)}, {"0" if (n == 0 and kk == 0) else d}')
        return m
    a(f's_lshl_b32 s{S_T2}, s{S_HP}, 18'); a(f's_lshl_b32 s{S_T0}, s{S_C}, 10'); a(f's_add_u32 s{S_T2}, s{S_T2}, s{S_T0}')
    a(f's_add_u32 s{S_T2}, s{S_T2}, {WS_KVP}')
    def hop1_loads():
        a(f's_mov_b32 s{S_T0}, s{S_T2}')
        for j in range(16):
            a(f'buffer_load_dwordx4 v[{G+4*j}:{G+4*j+3}], v{T+1}, {ws()}, s{S_T0} offen sc1')
            if j < 15: a(f's_add_u32 s{S_T0}, s{S_T0}, 16384')
    TMIN, TMAX = T+12, T+13
    def hop1_reduce():
        for step in (1, 2, 4, 8):
            for j in range(0, 16, 2*step):
                a(f'v_add_f32 v{G+4*j}, v{G+4*j}, v{G+4*(j+step)}'); a(f'v_add_f32 v{G+4*j+2}, v{G+4*j+2}, v{G+4*(j+step)+2}')
        a(f'v_cvt_pk_bf16_f32 v{T+14}, v{G}, v{G+2}'); a(f'v_mov_b32 v{T+15}, s{S_TAG}')
        a(f'v_lshlrev_b32 v{T+18}, 3, v1')
        a(f's_lshl_b32 s{S_T0}, s{S_HP}, 13'); a(f's_lshl_b32 s{S_T1}, s{S_C}, 9'); a(f's_add_u32 s{S_T0}, s{S_T0}, s{S_T1}'); a(f's_add_u32 s{S_T0}, s{S_T0}, {WS_KVF}')
        a(f'buffer_store_dwordx2 v[{T+14}:{T+15}], v{T+18}, {ws()}, s{S_T0} offen sc1')
        a(f's_mov_b32 s{S_DONE}, 1')
    def hop1_check():
        a(f'v_mov_b32 v{TMIN}, s{S_TAG}'); a(f'v_mov_b32 v{TMAX}, s{S_TAG}')
        for j in range(16):
            a(f'v_min3_u32 v{TMIN}, v{TMIN}, v{G+4*j+1}, v{G+4*j+3}'); a(f'v_max3_u32 v{TMAX}, v{TMAX}, v{G+4*j+1}, v{G+4*j+3}')
        a(f'v_cmp_ne_u32 vcc, v{TMIN}, v{TMAX}')
    def checkpoint(younger):
        lab = a.newlabel('cp'); lab2 = a.newlabel('cpr')
        a(f's_cmp_eq_u32 s{S_DONE}, 0'); a(f's_cbranch_scc0 {lab}')
        a(f's_waitcnt vmcnt({younger})')
        hop1_check()
        a(f's_cbranch_vccnz {lab2}')
        hop1_reduce()
        a(f's_branch {lab}')
        a.label(lab2)
        hop1_loads()
        a.label(lab)
    a(f's_cmp_eq_u32 s{S_W}, 0'); a(f's_cselect_b32 s{S_DONE}, 0, 1')
    CP = opt.get('cp', 1)
    if CP:
        lab = a.newlabel('h1i')
        a(f's_cbranch_scc0 {lab}')
        hop1_loads()
        a.label(lab)
    S_WR = S_KC
    a(f's_and_b32 s{S_T0}, s{S_HP}, 3'); a(f's_mul_i32 s{S_T0}, s{S_T0}, 112'); a(f's_lshl_b32 s{S_T1}, s{S_W}, 3'); a(f's_add_u32 s{S_T0}, s{S_T0}, s{S_T1}')
    a(f's_mul_i32 s{S_WR}, s{S_T0}, 896')
    a(f's_lshl_b32 s{S_WB2}, s{S_HP}, 7')
    a(f's_lshl_b32 s{S_HB}, s{S_W}, 10')
    a(f'v_and_b32 v{T+8}, 7, v1'); a(f'v_bfe_u32 v{T+9}, v1, 4, 1'); a(f'v_lshlrev_b32 v{T+9}, 2, v{T+9}')
    a(f'v_xor_b32 v{T+8}, v{T+8}, v{T+9}'); a(f'v_lshlrev_b32 v{T+8}, 4, v{T+8}')
    a(f'v_lshrrev_b32 v{T+9}, 3, v1'); a(f'v_mul_u32_u24 v{T+9}, 896, v{T+9}'); a(f'v_add_u32 v{VD_X}, v{T+8}, v{T+9}')
    def wo_atom(j):
        return [f's_add_u32 m0, s{S_HB}, {j*4096}', f's_add_u32 s{S_T4}, s{S_WR}, s{S_WB2}',
                f'buffer_load_dwordx4 v{VD_X}, s[{SRD_P}:{SRD_P+3}], s{S_T4} offen lds',
                f's_add_u32 s{S_WR}, s{S_WR}, {32*896}', f's_cmp_ge_u32 s{S_WR}, {448*896}',
                f's_cselect_b32 s{S_T1}, {448*896}, 0', f's_sub_u32 s{S_WR}, s{S_WR}, s{S_T1}']
    wo_plan = {5: [0, 1], 6: [2, 3], 7: [4, 5], 8: [6, 7], 10: [8, 9], 11: [10, 11], 12: [12], 13: [13]}
    if not opt.get('woq', 1): wo_plan = {}
    lskipwo = []
    for x in qreads(0, 0): a(x)
    for n in range(14):
        a('s_waitcnt lgkmcnt(0)')
        if n == 4:
            a('s_barrier')
            for i in (5, 6):
                for x in qa[i]:
                    for ins in x: a(ins)
        if n == 5 and CP: checkpoint(4)
        if n == 9:
            lab = a.newlabel('w9'); lab2 = a.newlabel('w9d')
            a(f's_cmp_eq_u32 s{S_HP}, 7'); a(f's_cbranch_scc1 {lab}')
            a(f's_waitcnt vmcnt({8 if wo_plan else 0})'); a(f's_branch {lab2}')
            a.label(lab); a('s_waitcnt vmcnt(0)'); a.label(lab2)
            a('s_barrier')
            if CP: checkpoint(0)
        if n == opt.get('h1n', 10) and not CP:
            lab = a.newlabel('h1i')
            a(f's_cmp_eq_u32 s{S_W}, 0'); a(f's_cbranch_scc0 {lab}')
            hop1_loads()
            a.label(lab)
        m = qmfmas(n, n & 1)
        rd = qreads(n+1, (n+1) & 1) if n < 13 else []
        wj = wo_plan.get(n, [])
        for j, ins in enumerate(m):
            a(ins)
            for x in rd[3*j:3*j+3]: a(x)
            if j >= 2 and j-2 < len(wj):
                lab = a.newlabel('wo')
                a(f's_cmp_eq_u32 s{S_HP}, 7'); a(f's_cbranch_scc1 {lab}')
                for x in wo_atom(wj[j-2]): a(x)
                a.label(lab)
    st.mark()
    if not wo_plan: a('s_barrier')
    a('s_nop 7'); a('s_nop 3')

    lnored = a.newlabel('nored')
    a(f's_cmp_eq_u32 s{S_DONE}, 0'); a(f's_cbranch_scc0 {lnored}')
    a(f's_mov_b32 s{S_SPIN}, 0')
    lp = a.newlabel('p1'); ld = a.newlabel('p1d'); lc = a.newlabel('p1c')
    a(f's_branch {lc}')
    a.label(lp)
    hop1_loads()
    a.label(lc)
    a('s_waitcnt vmcnt(0)')
    hop1_check()
    a(f's_add_u32 s{S_SPIN}, s{S_SPIN}, 1'); a(f's_cmp_lt_u32 s{S_SPIN}, {cap}')
    a(f's_cbranch_scc0 {ld}')
    a(f's_cbranch_vccnz {lp}')
    a.label(ld)
    hop1_reduce()
    a.label(lnored)
    st.mark()

    PQ = 24
    groups = phi_groups(list(range(AQ, AQ+32)), T+4)
    a(f'v_lshlrev_b32 v{T+18}, 3, v1')
    a(f's_lshl_b32 s{S_T2}, s{S_HP}, 13'); a(f's_lshl_b32 s{S_T0}, s{S_HH}, 12'); a(f's_add_u32 s{S_T2}, s{S_T2}, s{S_T0}'); a(f's_add_u32 s{S_T2}, s{S_T2}, {WS_KVF}')
    def hop2_loads():
        for rp in range(8):
            a(f'buffer_load_dwordx2 v[{G+2*rp}:{G+2*rp+1}], v{T+18}, {ws()}, s{S_T2} offen offset:{512*rp} sc1')
    for gi, g in enumerate(groups):
        for x in g: a(x)
        if gi == opt.get('h2at', 3): hop2_loads()
        if not wo_plan and gi < 7:
            lab = a.newlabel('wo')
            a(f's_cmp_eq_u32 s{S_HP}, 7'); a(f's_cbranch_scc1 {lab}')
            for j in (2*gi, 2*gi+1):
                for x in wo_atom(j): a(x)
            a.label(lab)
    a('v_cmp_gt_u32 vcc, 32, v1')
    for tt in range(2):
        for q in range(8):
            a(f'v_cvt_pk_bf16_f32 v{PQ+8*tt+q}, v{AQ+16*tt+2*q}, v{AQ+16*tt+2*q+1}')
        for q in (6, 7):
            a(f'v_cndmask_b32 v{PQ+8*tt+q}, 0, v{PQ+8*tt+q}, vcc')
    st.mark()

    a(f's_mov_b32 s{S_SPIN}, 0')
    lp = a.newlabel('p2'); ld = a.newlabel('p2d'); lc = a.newlabel('p2c')
    a('s_waitcnt vmcnt(0)')
    a(f's_branch {lc}')
    a.label(lp)
    hop2_loads()
    a('s_waitcnt vmcnt(0)')
    a.label(lc)
    a(f'v_mov_b32 v{T+12}, s{S_TAG}'); a(f'v_mov_b32 v{T+13}, s{S_TAG}')
    for rp in range(0, 8, 2):
        a(f'v_min3_u32 v{T+12}, v{T+12}, v{G+2*rp+1}, v{G+2*rp+3}'); a(f'v_max3_u32 v{T+13}, v{T+13}, v{G+2*rp+1}, v{G+2*rp+3}')
    a(f'v_cmp_ne_u32 vcc, v{T+12}, v{T+13}')
    a(f's_add_u32 s{S_SPIN}, s{S_SPIN}, 1'); a(f's_cmp_lt_u32 s{S_SPIN}, {cap}')
    a(f's_cbranch_scc0 {ld}')
    a(f's_cbranch_vccnz {lp}')
    a.label(ld)
    KA = 40
    for rp in range(8): a(f'v_mov_b32 v{KA+rp}, v{G+2*rp}')
    st.mark()
    NUM = 64
    a('s_nop 1')
    for tt in range(2):
        for ks in range(2):
            d = vr(NUM+16*tt, 16)
            a(f'v_mfma_f32_32x32x16_bf16 {d}, {vr(KA+4*ks,4)}, {vr(PQ+8*tt+4*ks,4)}, {"0" if ks == 0 else d}')
    a(f's_lshl_b32 s{S_T2}, s{S_C}, 2'); a(f's_lshl_b32 s{S_T0}, s{S_TH}, 1'); a(f's_add_u32 s{S_T2}, s{S_T2}, s{S_T0}'); a(f's_lshl_b32 s{S_T2}, s{S_T2}, 4')
    a(f's_lshl_b32 s{S_T0}, s{S_HP}, 1'); a(f's_add_u32 s{S_T2}, s{S_T2}, s{S_T0}'); a(f's_add_u32 s{S_T2}, s{S_T2}, s{S_HH}')
    a(f's_lshl_b32 s{S_T2}, s{S_T2}, 11'); a(f's_add_u32 s{S_T2}, s{S_T2}, {WS_OF}')
    a('v_cmp_gt_u32 vcc, 32, v1')
    a('s_nop 3')
    for tt in range(2):
        nb = NUM + 16*tt
        if tt == 0: a('s_nop 1')
        a(f'v_mov_b32 v{T+4}, v{nb+12}'); a(f'v_mov_b32 v{T+5}, v{nb+12}'); a('s_nop 1')
        a(f'v_permlane32_swap_b32 v{T+4}, v{T+5}'); a('s_nop 1')
        a(f'v_add_f32 v{T+5}, s{S_EPS}, v{T+5}'); a(f'v_rcp_f32 v{T+5}, v{T+5}'); a('s_nop 0')
        for r in range(0, 16, 2): a(f'v_pk_mul_f32 v[{nb+r}:{nb+r+1}], v[{nb+r}:{nb+r+1}], v[{T+4}:{T+5}] op_sel:[0,1] op_sel_hi:[1,1]')
        OP = G + 16 + 8*tt
        for q in range(8): a(f'v_cvt_pk_bf16_f32 v{OP+q}, v{nb+2*q}, v{nb+2*q+1}')
        for q in (6, 7): a(f'v_cndmask_b32 v{OP+q}, 0, v{OP+q}, vcc')
        for ks in range(2):
            a(f'buffer_store_dwordx4 v[{OP+4*ks}:{OP+4*ks+3}], v{T+1}, {ws()}, s{S_T2} offen offset:{1024*ks} sc1')
        if tt == 0: a(f's_add_u32 s{S_T2}, s{S_T2}, {16*2048}')
    ACC2, FR = 32, 64
    a(f'v_lshrrev_b32 v20, 5, v1'); a(f'v_mul_u32_u24 v20, {4*3584}, v20'); a(f'v_lshl_add_u32 v20, v{PP}, 2, v20')
    a(f's_lshl_b32 s{S_T1}, s{S_C}, 7'); a(f's_lshl_b32 s{S_T2}, s{S_TH}, 6'); a(f's_add_u32 s{S_T1}, s{S_T1}, s{S_T2}')
    a(f's_mul_i32 s{S_OB}, s{S_T1}, 3584'); a(f's_lshl_b32 s{S_T0}, s{S_HP}, 8'); a(f's_add_u32 s{S_OB}, s{S_OB}, s{S_T0}')
    a(f's_lshl_b32 s{S_T0}, s{S_HH}, 7'); a(f's_add_u32 s{S_OB}, s{S_OB}, s{S_T0}'); a(f's_add_u32 s{S_OB}, s{S_OB}, {448*4}')
    a(f's_lshl_b32 s{S_HB}, s{S_C}, 2'); a(f's_add_u32 s{S_HB}, s{S_HB}, s{S_W}'); a(f's_lshl_b32 s{S_HB}, s{S_HB}, 15'); a(f's_add_u32 s{S_HB}, s{S_HB}, {WS_OF}')
    a(f's_and_b32 s{S_KC}, s{S_HP}, 3')
    a(f's_lshl_b32 s{S_T0}, s{S_TH}, 16'); a(f'v_add_u32 v10, s{S_T0}, v{T+1}')
    flag_addr(a, T+16, 1, 8)
    a(f's_lshl_b32 s{S_T5}, s{S_C}, 10'); a(f's_add_u32 s{S_T5}, s{S_T5}, {WS_OFL}')
    a(f'v_bfe_u32 v{T+8}, v1, 2, 2'); a(f'v_lshrrev_b32 v{T+9}, 5, v1'); a(f'v_lshl_add_u32 v{T+9}, v{T+9}, 2, v{T+8}'); a(f'v_lshlrev_b32 v5, 7, v{T+9}')
    a(f'v_bfe_u32 v{T+9}, v1, 4, 1'); a(f'v_lshlrev_b32 v{T+9}, 1, v{T+9}'); a(f'v_bfe_u32 v{T+10}, v1, 1, 1'); a(f'v_add_u32 v{T+9}, v{T+9}, v{T+10}')
    a(f's_lshl_b32 s{S_T0}, s{S_HH}, 2'); a(f'v_add_u32 v{T+9}, s{S_T0}, v{T+9}')
    a(f'v_lshrrev_b32 v{T+8}, 1, v{T+8}'); a(f'v_lshlrev_b32 v{T+8}, 2, v{T+8}'); a(f'v_xor_b32 v{T+9}, v{T+9}, v{T+8}')
    a(f'v_lshl_add_u32 v5, v{T+9}, 4, v5')
    a(f'v_and_b32 v{T+8}, 1, v1'); a(f'v_lshl_add_u32 v5, v{T+8}, 3, v5')
    a('s_waitcnt vmcnt(0)')
    a('s_barrier')
    lab = a.newlabel('nofl')
    a(f's_cmp_eq_u32 s{S_W}, 0'); a(f's_cbranch_scc0 {lab}')
    a(f's_lshl_b32 s{S_T0}, s{S_HP}, 7'); a(f'v_mov_b32 v{T+13}, s{S_T0}'); a(f'v_mov_b32 v{T+14}, s{S_TAG}')
    a('s_mov_b64 exec, 1')
    a(f'buffer_store_dword v{T+14}, v{T+13}, {ws()}, s{S_T5} offen sc1')
    a('s_mov_b64 exec, -1')
    a.label(lab)
    st.mark()
    lend = a.newlabel('bend')
    a(f's_cmp_eq_u32 s{S_HP}, 7'); a(f's_cbranch_scc1 {lend}')
    for f in range(32):
        g, hg, ks = f >> 3, (f >> 1) & 3, f & 1
        for rd in range(2):
            a(f'ds_read_b64_tr_b16 a[{4*f+2*rd}:{4*f+2*rd+1}], v5 offset:{g*14336 + (hg*28 + 16*ks + 8*rd)*128}')
    a(f's_lshl_b32 s{S_LW2}, s{S_W}, 15')
    a('s_waitcnt lgkmcnt(0)')
    a('s_barrier')
    poll_flags(a, 8, S_T5, T+16, T+17, S_TAG, cap)
    lab = a.newlabel('noep')
    a(f's_cmp_eq_u32 s{S_C}, 15'); a(f's_cbranch_scc0 {lab}')
    a(f's_cmp_eq_u32 s{S_HP}, 0'); a(f's_cbranch_scc0 {lab}')
    a(f's_cmp_eq_u32 s{S_W}, 0'); a(f's_cbranch_scc0 {lab}')
    a(f'v_mov_b32 v{T+13}, 0'); a(f'v_mov_b32 v{T+14}, s{S_TAG}')
    a('s_mov_b64 exec, 1')
    a(f'buffer_store_dword v{T+14}, v{T+13}, {ws()}, 0 offen offset:{WS_EPB} sc1')
    a('s_mov_b64 exec, -1')
    a('s_waitcnt vmcnt(0)')
    a.label(lab)
    st.mark()
    def dma2(g):
        at = []
        for h in range(2):
            for u in range(4):
                x = []
                if u == 0:
                    x += [f's_add_u32 m0, s{S_LW2}, {g*8192 + h*4096}', f's_lshl_b32 s{S_T4}, s{S_KC}, 13', f's_add_u32 s{S_T4}, s{S_T4}, s{S_HB}']
                    if h: x.append(f's_add_u32 s{S_T4}, s{S_T4}, 4096')
                x.append(f'buffer_load_dwordx4 v{T+1}, {ws()}, s{S_T4} offen offset:{1024*u} sc1 lds')
                if h == 1 and u == 3:
                    x += [f's_add_u32 s{S_KC}, s{S_KC}, 1', f's_and_b32 s{S_KC}, s{S_KC}, 3']
                at.append(x)
        return at
    for g in range(2):
        for x in dma2(g):
            for ins in x: a(ins)
    def reads2(g, n, fs):
        b = FR + 16*fs; out = []
        for kk in range(2):
            i = 8*g + 2*n + kk
            for mt in range(2):
                out.append(f'ds_read_b128 v[{b+8*kk+4*mt}:{b+8*kk+4*mt+3}], v10 offset:{mt*32768 + i*1024}')
        return out
    def mfmas2(g, n, fs):
        b = FR + 16*fs; out = []
        for kk in range(2):
            i = 8*g + 2*n + kk
            for mt in range(2):
                out.append(f'v_mfma_f32_32x32x16_bf16 {vr(ACC2+16*mt,16)}, {vr(b+8*kk+4*mt,4)}, {ar(4*i,4)}, {"0" if i == 0 else vr(ACC2+16*mt,16)}')
        return out
    gemm_loop(a, 4, 4, reads2, mfmas2, dma2, 8, opt.get('b2r', 2), depth=opt.get('b2d', 1))
    st.mark()
    a('s_nop 7'); a('s_nop 3')
    out_store(a, ACC2, S_OB, 20, opt.get('oflags', ''))
    a.label(lend)
    st.flush()
    a('s_endpgm')
```

```python
from common import *

S_XCD, S_W, S_C, S_S, S_J = 3, 4, 5, 6, 7
SRD_X, SRD_W, SRD_WS, SRD_OUT = 40, 44, 48, 68
SRD_P = 36
S_TAG, S_KOFF, S_XB, S_WB, S_LDSW, S_TH, S_SH = 52, 53, 54, 55, 56, 57, 58
S_T0, S_T1, S_T2, S_T3, S_SPIN = 59, 60, 61, 62, 63
S_L2E, S_EPS, S_LW2, S_T4 = 64, 65, 66, 67
S_KC, S_HB, S_OB, S_WB2, S_TAG2, S_T5 = 72, 73, 74, 75, 76, 77

WS_EPA, WS_EPB, WS_HFL, WS_OFL = 0, 128, 0x30000, 0x34000

class Stamps:
    def __init__(self, a, on):
        self.a, self.on, self.n = a, on, 0
    def mark(self):
        if self.on:
            assert self.n < 11
            ins = 's_memtime' if self.on == 3 else 's_memrealtime'
            self.a(f'{ins} s[{80+2*self.n}:{81+2*self.n}]')
            self.n += 1
    def flush(self):
        if not self.on: return
        a = self.a
        a('s_waitcnt lgkmcnt(0)')
        a(f's_lshl_b32 s{S_T0}, s2, 2'); a(f's_add_u32 s{S_T0}, s{S_T0}, s{S_W}'); a(f's_lshl_b32 s{S_T0}, s{S_T0}, 6')
        a(f's_add_u32 s{S_T0}, s{S_T0}, {WS_STAMP}')
        a('v_mov_b32 v2, 0')
        for i in range(self.n):
            a(f'v_mov_b32 v3, s{80+2*i}')
            a(f'buffer_store_dword v3, v2, s[{SRD_WS}:{SRD_WS+3}], s{S_T0} offen offset:{4*i}')

def ws(): return f's[{SRD_WS}:{SRD_WS+3}]'

def lcg(a, dst, vsrc):
    a(f'v_readfirstlane_b32 s{dst}, v{vsrc}')
    a('s_nop 3')
    a(f's_mul_i32 s{dst}, s{dst}, {LCG_A}')
    a(f's_add_u32 s{dst}, s{dst}, {LCG_C}')

def cmul(a, dr, di, ar_, ai, br, bi):
    a(f'v_mul_f32 v{dr}, v{ar_}, v{br}')
    a(f'v_mul_f32 v{di}, v{ar_}, v{bi}')
    a(f'v_fma_f32 v{dr}, -v{ai}, v{bi}, v{dr}')
    a(f'v_fmac_f32 v{di}, v{ai}, v{br}')

def csq(a, dr, di, ar_, ai):
    a(f'v_mul_f32 v{dr}, v{ar_}, v{ar_}')
    a(f'v_mul_f32 v{di}, v{ar_}, v{ai}')
    a(f'v_fma_f32 v{dr}, -v{ai}, v{ai}, v{dr}')
    a(f'v_add_f32 v{di}, v{di}, v{di}')

def cfma(a, dr, di, mr, mi, xr, xi, br, bi):
    a(f'v_fma_f32 v{dr}, v{mr}, v{xr}, v{br}'); a(f'v_fma_f32 v{di}, v{mr}, v{xi}, v{bi}')
    a(f'v_fma_f32 v{dr}, -v{mi}, v{xi}, v{dr}'); a(f'v_fmac_f32 v{di}, v{mi}, v{xr}')

def lam_bar(a, vlre, vlim, vldt, dr, di, t0, t1, t2):
    a(f'v_lshlrev_b32 v{vlre}, 16, v{vlre}')
    a(f'v_lshlrev_b32 v{vlim}, 16, v{vlim}')
    a(f'v_lshlrev_b32 v{vldt}, 16, v{vldt}')
    a(f'v_mul_f32 v{t0}, {hex(LOG2E)}, v{vldt}')
    a(f'v_exp_f32 v{t0}, v{t0}')
    a('s_nop 0')
    a(f'v_cvt_pk_bf16_f32 v{t0}, v{t0}, v{t0}')
    a(f'v_and_b32 v{t0}, 0xffff0000, v{t0}')
    a(f'v_mul_f32 v{t1}, v{t0}, v{vlre}')
    a(f'v_mul_f32 v{t2}, v{t0}, v{vlim}')
    a(f'v_mul_f32 v{t1}, {hex(LOG2E)}, v{t1}')
    a(f'v_mul_f32 v{t2}, {hex(INV2PI)}, v{t2}')
    a(f'v_exp_f32 v{t1}, v{t1}')
    a(f'v_fract_f32 v{t2}, v{t2}')
    a(f'v_cos_f32 v{dr}, v{t2}')
    a(f'v_sin_f32 v{di}, v{t2}')
    a('s_nop 0')
    a(f'v_mul_f32 v{dr}, v{dr}, v{t1}')
    a(f'v_mul_f32 v{di}, v{di}, v{t1}')

def mod7(a, s):
    for sub in (14, 7, 7):
        a(f's_cmp_ge_u32 s{s}, {sub}'); a(f's_cselect_b32 s{S_T0}, {sub}, 0'); a(f's_sub_u32 s{s}, s{s}, s{S_T0}')

def spread(slots, atoms):
    out = [[] for _ in range(slots)]
    n = len(atoms)
    for i, at in enumerate(atoms):
        out[min(slots-1, (i*slots)//n + (slots//n)//2)].append(at)
    return out

EXP = {}
def gemm_loop(a, nchunks, nsteps, reads, mfmas, dma_atoms, ndma, rper, dist=2, depth=1, first_mark=None,
              extra=None, extra_vm=None, first_wait=True):
    total = nchunks*nsteps
    nsets = depth + 1
    if first_wait:
        a(f's_waitcnt vmcnt({(min(nchunks, dist) - 1)*ndma})')
        a('s_barrier')
    if first_mark: first_mark()
    for d in range(depth):
        for x in reads(*divmod(d, nsteps), d % nsets): a(x)
    per_step = [[] for _ in range(total)]
    if not EXP.get('nodma'):
        for p in range(nchunks):
            if p + dist >= nchunks: continue
            lo = max(0, p*nsteps - depth); hi = (p+1)*nsteps - depth
            steps = list(range(lo, hi))
            at = dma_atoms(p+dist)
            for j, x in enumerate(at):
                per_step[steps[(j*len(steps))//len(at)]].append(x)
    if extra:
        for n, ats in extra.items(): per_step[n] = per_step[n] + list(ats)
    for n in range(total):
        i, ks = divmod(n, nsteps)
        nxt = n + depth
        opens = nxt < total and nxt % nsteps == 0
        R = len(reads(*divmod(min(n+1, total-1), nsteps), 0)) if depth > 1 else 0
        left = min(depth-1, total-1-n)
        if opens:
            a('s_waitcnt lgkmcnt(0)')
            p1 = nxt // nsteps
            later = min(nchunks-1, p1-1+dist) - p1
            a(f's_waitcnt vmcnt({later*ndma + (extra_vm or {}).get(p1, 0)})')
            a('s_barrier')
        else:
            a(f's_waitcnt lgkmcnt({left*R})')
        m = mfmas(i, ks, n % nsets)
        rd = list(reads(*divmod(nxt, nsteps), nxt % nsets)) if nxt < total else []
        at = list(per_step[n])
        nslots_r = (len(rd) + rper - 1)//rper
        free = list(range(min(nslots_r, len(m)-1), len(m)))
        plan = [[] for _ in m]
        for j, x in enumerate(at): plan[free[(j*len(free))//len(at)]].append(x)
        for j, ins in enumerate(m):
            if not EXP.get('nomfma'): a(ins)
            for x in rd[j*rper:(j+1)*rper]: a(x)
            if j == len(m)-1:
                for x in rd[(j+1)*rper:]: a(x)
            for atom in plan[j]:
                for x in atom: a(x)

def poll_flags(a, nflags, off_sgpr, vaddr, vtmp, tag, cap, first_loaded=False):
    lp = a.newlabel('fl'); ld = a.newlabel('fld'); lc = a.newlabel('flc')
    a(f's_mov_b32 s{S_SPIN}, 0')
    if first_loaded: a(f's_branch {lc}')
    a.label(lp)
    a(f'buffer_load_dword v{vtmp}, v{vaddr}, {ws()}, s{off_sgpr} offen sc1')
    a('s_waitcnt vmcnt(0)')
    a.label(lc)
    a(f'v_cmp_ne_u32 vcc, s{tag}, v{vtmp}')
    a(f's_add_u32 s{S_SPIN}, s{S_SPIN}, 1'); a(f's_cmp_lt_u32 s{S_SPIN}, {cap}')
    a(f's_cbranch_scc0 {ld}')
    a(f's_cbranch_vccnz {lp}')
    a.label(ld)

def flag_addr(a, v, lane, nflags):
    a(f'v_min_u32 v{v}, {nflags-1}, v{lane}'); a(f'v_lshlrev_b32 v{v}, 7, v{v}')

def out_store(a, acc, base_sgpr, vaddr, flags=''):
    for mt in range(2):
        for r in range(16):
            row = 32*mt + (r//4)*8 + r % 4
            a(f's_add_u32 s{S_T0}, s{base_sgpr}, {row*3584}')
            a(f'buffer_store_dword v{acc+16*mt+r}, v{vaddr}, s[{SRD_OUT}:{SRD_OUT+3}], s{S_T0} offen {flags}')
```

```python
import sys
from v6lib import *
from v6a import role_A
from v6b import role_B
KN = 'concat_heads__ssm_conv_s5__linear_attn_block__prompt_kernel'
HDR = '''; Kernarg layout (120 bytes, ptrs only, base s[0:1]): d_in[0..11], d_out, d_debug, d_ws
'''
def build(opt):
    import v6lib
    v6lib.EXP.clear(); v6lib.EXP.update(opt)
    a = Asm()
    a(HDR.rstrip())
    a('; @launch grid=(256,1,1) block=(256,1,1) lds=163840')
    a('.amdgcn_target "amdgcn-amd-amdhsa--gfx950"')
    kernel_header(a, KN)
    load_kernargs(a)
    a('s_cmp_ge_u32 s2, 256'); a('s_cbranch_scc1 L_exit')
    a('v_and_b32 v1, 63, v0'); a('v_lshrrev_b32 v2, 6, v0')
    a(f's_and_b32 s{S_XCD}, s2, 7'); a(f's_lshr_b32 s{S_J}, s2, 3')
    a(f'v_readfirstlane_b32 s{S_W}, v2')
    if opt.get('codepf', 1):
        a('s_getpc_b64 s[38:39]')
        a('L_pc:')
        a(f's_lshl_b32 s{S_T0}, s{S_J}, 10'); a(f's_lshl_b32 s{S_T1}, s{S_W}, 8'); a(f's_add_u32 s{S_T0}, s{S_T0}, s{S_T1}')
        a(f's_min_u32 s{S_T0}, s{S_T0}, L_codeend - L_pc - 256')
        a(f'v_lshlrev_b32 v2, 7, v1'); a(f'v_add_u32 v2, s{S_T0}, v2')
        a('s_mov_b64 exec, 3')
        a('global_load_dword v255, v2, s[38:39]')
        a('s_mov_b64 exec, -1')
    a(f's_and_b32 s{S_C}, s{S_XCD}, 3'); a(f's_lshl_b32 s{S_C}, s{S_C}, 2'); a(f's_and_b32 s{S_S}, s{S_J}, 3'); a(f's_add_u32 s{S_C}, s{S_C}, s{S_S}')
    a(f's_lshr_b32 s{S_S}, s{S_J}, 2')
    a(f's_cmp_ge_u32 s{S_XCD}, 4'); a('s_cbranch_scc1 L_roleB')
    a(f's_cmp_eq_u32 s{S_S}, 7'); a('s_cbranch_scc1 L_exit')
    role_A(a, opt)
    a.label('L_roleB')
    role_B(a, opt)
    a.label('L_exit')
    a('s_endpgm')
    a('.fill 64, 4, 0xbf800000')
    a('.p2align 8'); a('L_codeend:')
    kernel_desc(a, KN, vgpr=480, accum=256)
    return a.text()
if __name__ == '__main__':
    opt = {}
    for kv in sys.argv[2:]:
        k, _, v = kv.partition('=')
        opt[k] = (int(v) if v.lstrip('-').isdigit() else v) if v else 1
    open(sys.argv[1], 'w').write(build(opt))
```

```python
import sys
from v6lib import *
from v6a import role_A
from v6b import role_B
KN = 'concat_heads__ssm_conv_s5__linear_attn_block__prompt_kernel'
HDR = '''; Kernarg layout (120 bytes, ptrs only, base s[0:1]): d_in[0..11], d_out, d_debug, d_ws
'''
def build(opt):
    import v6lib
    v6lib.EXP.clear(); v6lib.EXP.update(opt)
    a = Asm()
    a(HDR.rstrip())
    a('; @launch grid=(256,1,1) block=(256,1,1) lds=163840')
    a('.amdgcn_target "amdgcn-amd-amdhsa--gfx950"')
    kernel_header(a, KN)
    load_kernargs(a)
    a('s_cmp_ge_u32 s2, 256'); a('s_cbranch_scc1 L_exit')
    a('v_and_b32 v1, 63, v0'); a('v_lshrrev_b32 v2, 6, v0')
    a(f's_and_b32 s{S_XCD}, s2, 7'); a(f's_lshr_b32 s{S_J}, s2, 3')
    a(f'v_readfirstlane_b32 s{S_W}, v2')
    if opt.get('codepf', 1):
        a('s_getpc_b64 s[38:39]')
        a('L_pc:')
        a(f's_lshl_b32 s{S_T0}, s{S_J}, 10'); a(f's_lshl_b32 s{S_T1}, s{S_W}, 8'); a(f's_add_u32 s{S_T0}, s{S_T0}, s{S_T1}')
        a(f's_min_u32 s{S_T0}, s{S_T0}, L_codeend - L_pc - 256')
        a(f'v_lshlrev_b32 v2, 7, v1'); a(f'v_add_u32 v2, s{S_T0}, v2')
        a('s_mov_b64 exec, 3')
        a('global_load_dword v255, v2, s[38:39]')
        a('s_mov_b64 exec, -1')
    a(f's_and_b32 s{S_C}, s{S_XCD}, 3'); a(f's_lshl_b32 s{S_C}, s{S_C}, 2'); a(f's_and_b32 s{S_S}, s{S_J}, 3'); a(f's_add_u32 s{S_C}, s{S_C}, s{S_S}')
    a(f's_lshr_b32 s{S_S}, s{S_J}, 2')
    if opt.get('map', 1) == 1:
        a(f's_cmp_ge_u32 s{S_XCD}, 4'); a('s_cbranch_scc1 L_roleB')
        a(f's_cmp_eq_u32 s{S_S}, 7'); a('s_cbranch_scc1 L_exit')
    elif opt.get('map') == 3:
        a(f's_cmp_eq_u32 s{S_S}, 7'); a('s_cbranch_scc0 L_not7')
        a(f's_cmp_ge_u32 s{S_XCD}, 4'); a('s_cbranch_scc1 L_exit')
        a('s_branch L_roleB')
        a('L_not7:')
        a(f's_cmp_ge_u32 s{S_XCD}, 4'); a('s_cbranch_scc1 L_roleB')
    role_A(a, opt)
    a.label('L_roleB')
    role_B(a, opt)
    a.label('L_exit')
    a('s_endpgm')
    a('.fill 64, 4, 0xbf800000')
    a('.p2align 8'); a('L_codeend:')
    kernel_desc(a, KN, vgpr=480, accum=256)
    return a.text()
if __name__ == '__main__':
    opt = {}
    for kv in sys.argv[2:]:
        k, _, v = kv.partition('=')
        opt[k] = (int(v) if v.lstrip('-').isdigit() else v) if v else 1
    open(sys.argv[1], 'w').write(build(opt))
```

```python
import sys, importlib
from common import *
def with_amp(mod, opt, M, iA, iB):
    build = importlib.import_module(mod)
    txt = build.build(dict(opt, stamps=1))
    KN = build.KN
    lines = txt.split('\n')
    i = max(j for j,l in enumerate(lines) if l.startswith('; @launch'))
    lines[i] = f'; @launch kernel={KN} grid=(256,1,1) block=(256,1,1) lds=163840'
    lines.insert(i+1, '; @launch kernel=s5la_c_kernel grid=(1,1,1) block=(256,1,1) lds=1024')
    txt = '\n'.join(lines)
    a = Asm()
    n = 's5la_c_kernel'
    kernel_header(a, n)
    a('s_load_dwordx2 s[36:37], s[0:1], 112')
    a('s_cmp_ge_u32 s2, 1'); a('s_cbranch_scc1 L_c_end')
    a('s_waitcnt lgkmcnt(0)')
    srd(a, 48, 36, WS_SIZE)
    a('v_mov_b32 v10, 0'); a('v_mov_b32 v11, -1'); a('v_mov_b32 v12, 0')
    a('ds_write_b32 v10, v11'); a('ds_write_b32 v10, v12 offset:4')
    a('s_waitcnt lgkmcnt(0)'); a('s_barrier')
    a('v_lshlrev_b32 v1, 8, v0')
    a('v_lshrrev_b32 v2, 3, v0'); a('v_cmp_gt_u32 vcc, 28, v2'); a('s_and_saveexec_b64 s[10:11], vcc')
    a('s_cbranch_execz L_c_skip')
    a(f's_mov_b32 s12, {WS_STAMP}')
    a('buffer_load_dword v3, v1, s[48:51], s12 offen sc1')
    a('v_and_b32 v5, 4, v0'); a('v_cmp_eq_u32 vcc, 0, v5'); a(f'v_mov_b32 v6, {4*max(iB,0)}'); a(f'v_mov_b32 v7, {4*max(iA,0)}'); a('v_cndmask_b32 v6, v6, v7, vcc')
    a('v_add_u32 v6, v6, v1')
    a('buffer_load_dword v4, v6, s[48:51], s12 offen sc1')
    a('s_waitcnt vmcnt(0)')
    a('ds_min_u32 v10, v3')
    a('v_and_b32 v5, 4, v0')
    if iA < 0: a('v_cmp_ne_u32 vcc, 0, v5'); a('s_and_b64 exec, exec, vcc')
    if iB < 0: a('v_cmp_eq_u32 vcc, 0, v5'); a('s_and_b64 exec, exec, vcc')
    a('ds_max_u32 v10, v4 offset:4')
    a('L_c_skip:')
    a('s_mov_b64 exec, s[10:11]')
    a('s_waitcnt lgkmcnt(0)'); a('s_barrier')
    a('ds_read_b64 v[14:15], v10'); a('s_waitcnt lgkmcnt(0)')
    a('v_sub_u32 v14, v15, v14'); a('s_nop 0'); a('v_readfirstlane_b32 s14, v14'); a('s_nop 3')
    a('s_min_u32 s14, s14, 20000')
    a(f's_mul_i32 s14, s14, {M}')
    a('s_memrealtime s[16:17]'); a('s_waitcnt lgkmcnt(0)')
    a('L_c_spin:')
    a('s_memrealtime s[18:19]'); a('s_waitcnt lgkmcnt(0)')
    a('s_sub_u32 s20, s18, s16'); a('s_cmp_lt_u32 s20, s14'); a('s_cbranch_scc1 L_c_spin')
    a('L_c_end:')
    a('s_endpgm')
    kernel_desc(a, n, vgpr=32, sgpr=64, accum=32)
    return txt + a.text()
if __name__ == '__main__':
    mod = sys.argv[1]; opt = {}
    pts = []
    for kv in sys.argv[2:]:
        if kv.startswith('@'):
            pts.append(kv[1:]); continue
        k, _, v = kv.partition('=')
        opt[k] = (int(v) if v.lstrip('-').isdigit() else v) if v else 1
    for p in pts:
        name, M, iA, iB = p.split(',')
        open(f'cdna_kernels/{name}.s', 'w').write(with_amp(mod, opt, int(M), int(iA), int(iB)))
```

```python
import sys, importlib
from common import *
def with_amp(mod, opt, M, iA, iB):
    build = importlib.import_module(mod)
    txt = build.build(dict(opt, stamps=1))
    KN = build.KN
    lines = txt.split('\n')
    i = max(j for j,l in enumerate(lines) if l.startswith('; @launch'))
    lines[i] = f'; @launch kernel={KN} grid=(256,1,1) block=(256,1,1) lds=163840'
    lines.insert(i+1, '; @launch kernel=s5la_c_kernel grid=(1,1,1) block=(256,1,1) lds=1024')
    txt = '\n'.join(lines)
    a = Asm()
    n = 's5la_c_kernel'
    kernel_header(a, n)
    a('s_load_dwordx2 s[36:37], s[0:1], 112')
    a('s_cmp_ge_u32 s2, 1'); a('s_cbranch_scc1 L_c_end')
    a('s_waitcnt lgkmcnt(0)')
    srd(a, 48, 36, WS_SIZE)
    a('v_mov_b32 v10, 0'); a('v_mov_b32 v11, -1'); a('v_mov_b32 v12, 0')
    a('ds_write_b32 v10, v11'); a('ds_write_b32 v10, v12 offset:4')
    a('s_waitcnt lgkmcnt(0)'); a('s_barrier')
    a('v_lshlrev_b32 v1, 8, v0')
    a('v_lshrrev_b32 v2, 3, v0'); a('v_cmp_gt_u32 vcc, 28, v2'); a('s_and_saveexec_b64 s[10:11], vcc')
    a('s_cbranch_execz L_c_skip')
    a(f's_mov_b32 s12, {WS_STAMP}')
    a('buffer_load_dword v3, v1, s[48:51], s12 offen sc1')
    EQ, NE = ('ne', 'eq') if opt.get('swap') else ('eq', 'ne')
    a('v_and_b32 v5, 4, v0'); a(f'v_cmp_{EQ}_u32 vcc, 0, v5'); a(f'v_mov_b32 v6, {4*max(iB,0)}'); a(f'v_mov_b32 v7, {4*max(iA,0)}'); a('v_cndmask_b32 v6, v6, v7, vcc')
    a('v_add_u32 v6, v6, v1')
    a('buffer_load_dword v4, v6, s[48:51], s12 offen sc1')
    a('s_waitcnt vmcnt(0)')
    a('ds_min_u32 v10, v3')
    a('v_and_b32 v5, 4, v0')
    if iA < 0: a(f'v_cmp_{NE}_u32 vcc, 0, v5'); a('s_and_b64 exec, exec, vcc')
    if iB < 0: a(f'v_cmp_{EQ}_u32 vcc, 0, v5'); a('s_and_b64 exec, exec, vcc')
    a('ds_max_u32 v10, v4 offset:4')
    a('L_c_skip:')
    a('s_mov_b64 exec, s[10:11]')
    a('s_waitcnt lgkmcnt(0)'); a('s_barrier')
    a('ds_read_b64 v[14:15], v10'); a('s_waitcnt lgkmcnt(0)')
    a('v_sub_u32 v14, v15, v14'); a('s_nop 0'); a('v_readfirstlane_b32 s14, v14'); a('s_nop 3')
    a('s_min_u32 s14, s14, 20000')
    a(f's_mul_i32 s14, s14, {M}')
    a('s_memrealtime s[16:17]'); a('s_waitcnt lgkmcnt(0)')
    a('L_c_spin:')
    a('s_memrealtime s[18:19]'); a('s_waitcnt lgkmcnt(0)')
    a('s_sub_u32 s20, s18, s16'); a('s_cmp_lt_u32 s20, s14'); a('s_cbranch_scc1 L_c_spin')
    a('L_c_end:')
    a('s_endpgm')
    kernel_desc(a, n, vgpr=32, sgpr=64, accum=32)
    return txt + a.text()
if __name__ == '__main__':
    mod = sys.argv[1]; opt = {}
    pts = []
    for kv in sys.argv[2:]:
        if kv.startswith('@'):
            pts.append(kv[1:]); continue
        k, _, v = kv.partition('=')
        opt[k] = (int(v) if v.lstrip('-').isdigit() else v) if v else 1
    for p in pts:
        name, M, iA, iB = p.split(',')
        open(f'cdna_kernels/{name}.s', 'w').write(with_amp(mod, opt, int(M), int(iA), int(iB)))
```
